```python
import torch

def _softmax(x, axis=-1):
    return torch.softmax(x, dim=axis)
def _gelu(x):
    return torch.nn.functional.gelu(x, approximate="tanh")
def _silu(x):
    return torch.nn.functional.silu(x)
def _sigmoid(x):
    return torch.sigmoid(x)
def _layernorm(x, axis=-1, eps=1e-5):
    m = x.mean(dim=axis, keepdim=True)
    v = x.var(dim=axis, keepdim=True, unbiased=False)
    return (x - m) / torch.sqrt(v + eps)
def _scatter_add(tgt, idx, src, axis=0):
    return tgt.clone().index_add_(axis, idx, src)
def _segment_sum(src, seg, n):
    out = torch.zeros((n,) + src.shape[1:], dtype=src.dtype)
    return out.index_add_(0, seg, src)
def _pad(x, pw):
    flat = tuple(v for pair in reversed(pw) for v in pair)
    return torch.nn.functional.pad(x, flat)

kernel_name = 'parallel_sum__sliding_block__mixer_token_mlp__prompt'

def setup_inputs():

    _w = (lambda a: (lambda t: t.to(torch.bfloat16) if t.is_floating_point() else t)(torch.as_tensor(a)))
    def _A_setup():
        B, S, D = 1, 2048, 576
        return {
            "x": _w((lambda *s: torch.randn(*s, dtype=torch.bfloat16) * 0.05)(B, S, D)),
            "wqkv": _w((lambda *s: torch.randn(*s, dtype=torch.bfloat16) * 0.05)(D, 3 * D)),
            "wo": _w((lambda *s: torch.randn(*s, dtype=torch.bfloat16) * 0.05)(D, D)),
        }
    _A_in = _A_setup()

    def _B_setup():
        B, S, D, F = 1, 2048, 576, 4608
        return {
            "x": _w((lambda *s: torch.randn(*s, dtype=torch.bfloat16) * 0.05)(B, S, D)),
            "w1": _w((lambda *s: torch.randn(*s, dtype=torch.bfloat16) * 1.6)(S, F) * (S ** -0.5)),
            "b1": _w((lambda *s: torch.randn(*s, dtype=torch.bfloat16) * 12.8)(F) * 0.02),
            "w2": _w((lambda *s: torch.randn(*s, dtype=torch.bfloat16) * 0.4)(F, S) * (F ** -0.5)),
            "b2": _w((lambda *s: torch.randn(*s, dtype=torch.bfloat16) * 6.4)(S) * 0.02),
        }
    _B_in = _B_setup()

    return {
        "A_x": _A_in["x"],
        "A_wqkv": _A_in["wqkv"],
        "A_wo": _A_in["wo"],
        "B_x": _B_in["x"],
        "B_w1": _B_in["w1"],
        "B_b1": _B_in["b1"],
        "B_w2": _B_in["w2"],
        "B_b2": _B_in["b2"],
    }

def reference(A_x, A_wqkv, A_wo, B_x, B_w1, B_b1, B_w2, B_b2):
    def _A_ref(x, wqkv, wo):
        B, S, D = x.shape
        H = 32; Dh = D // H; W = 256
        qkv = (lambda x, *d: x.permute(*d))((x @ wqkv).reshape(B, S, 3, H, Dh), 2, 0, 3, 1, 4)
        q, k, v = qkv[0], qkv[1], qkv[2]
        scores = torch.einsum("bhqd,bhkd->bhqk", q, k) * (Dh ** -0.5)
        idx = torch.arange(S)
        mask = (idx[:, None] - idx[None, :] >= 0) & (idx[:, None] - idx[None, :] < W)
        scores = torch.where(mask[None, None], scores, -1e9)
        p = _softmax(scores, axis=-1)
        o = torch.einsum("bhqk,bhkd->bhqd", p, v)
        return (lambda x, *d: x.permute(*d))(o, 0, 2, 1, 3).reshape(B, S, D) @ wo

    def _B_ref(x, w1, b1, w2, b2):
        B, S, D = x.shape
        h = _layernorm(x, axis=-1)
        u = torch.einsum("bsd,sf->bdf", h, w1) + b1
        u = _gelu(u)
        y = torch.einsum("bdf,fs->bds", u, w2) + b2
        return (lambda x, *d: x.permute(*d))(y, 0, 2, 1)

    x = A_x
    xn = _layernorm(x, axis=-1)
    return x + _A_ref(xn, A_wqkv, A_wo) + _B_ref(xn, B_w1, B_b1, B_w2, B_b2)
```

```python
import re

class Emit:
    def __init__(self):
        self.lines = []
        self.hist = []
        self.uid = 0

    @staticmethod
    def regs(tok):
        tok = tok.strip()
        tok = tok.lstrip('-')
        if tok.startswith('abs(') or tok.startswith('|'):
            tok = tok.strip('|').replace('abs(', '').rstrip(')')
        m = re.fullmatch(r'([vas])(\d+)', tok)
        if m: return [(m.group(1), int(m.group(2)))]
        m = re.fullmatch(r'([vas])\[(\d+):(\d+)\]', tok)
        if m: return [(m.group(1), i) for i in range(int(m.group(2)), int(m.group(3)) + 1)]
        if tok == 'vcc': return [('s', 'vcc')]
        if tok == 'exec': return [('s', 'exec')]
        if tok == 'm0': return [('s', 'm0')]
        return []

    def classify(self, ins):
        parts = ins.split(None, 1)
        mn = parts[0]
        rest = parts[1] if len(parts) > 1 else ''
        ops = []
        depth = 0; cur = ''
        for ch in rest:
            if ch == '[': depth += 1
            if ch == ']': depth -= 1
            if ch == ',' and depth == 0:
                ops.append(cur.strip()); cur = ''
            else: cur += ch
        if cur.strip(): ops.append(cur.strip())
        mods = ''
        if ops:
            sp = ops[-1].split(None, 1)
            if len(sp) > 1:
                ops[-1] = sp[0]; mods = sp[1]
        d = dict(mn=mn, w=set(), r=set(), kind='other', passes=0, srcc=set(), mods=mods, sdata=set())
        R = self.regs
        def rd(lst):
            for o in lst: d['r'].update(R(o))
        if mn.startswith('v_mfma'):
            d['kind'] = 'mfma'
            d['passes'] = 8 if '32x32' in mn else 4
            d['w'].update(R(ops[0])); rd(ops[1:]); d['srcc'].update(R(ops[3])); d['ab'] = set(R(ops[1])) | set(R(ops[2]))
        elif mn.startswith('v_cmp'):
            d['kind'] = 'valu'; d['w'].update(R(ops[0])); rd(ops[1:])
            if mn.startswith('v_cmpx'): d['w'].add(('s', 'exec'))
        elif mn.startswith('v_readfirstlane') or mn.startswith('v_readlane'):
            d['kind'] = 'valu'; d['rl'] = True; d['w'].update(R(ops[0])); rd(ops[1:])
        elif mn.startswith('v_permlane'):
            d['kind'] = 'valu'; d['perm'] = True
            d['w'].update(R(ops[0])); d['w'].update(R(ops[1])); rd(ops)
        elif mn.startswith('v_'):
            d['kind'] = 'valu'
            d['w'].update(R(ops[0]))
            k = 1
            if '_co_' in mn: d['w'].update(R(ops[1])); k = 2
            rd(ops[k:])
            if mn.startswith(('v_fmac', 'v_dot2c', 'v_pk_fmac')): rd(ops[:1])
            if mn.startswith('v_cndmask') and len(ops) == 3: d['r'].add(('s', 'vcc'))
            if re.match(r'v_(exp|log|rcp|rsq|sqrt|sin|cos)_', mn): d['trans'] = True
            if mn.startswith('v_dot'): d['dot'] = True
            if 'dpp' in mn or 'quad_perm' in mods or 'row_' in mods: d['dpp'] = True
            if 'sdwa' in mn or 'op_sel' in mods: d['sel'] = True
        elif mn.startswith(('buffer_load', 'global_load')):
            d['kind'] = 'vmem'
            if 'lds' in mods.split() or '_lds_' in mn:
                rd(ops); d['r'].add(('s', 'm0')); d['ldsdma'] = True
            else:
                d['w'].update(R(ops[0])); rd(ops[1:])
        elif mn.startswith(('buffer_store', 'global_store', 'buffer_atomic', 'global_atomic')):
            d['kind'] = 'vmem'; rd(ops)
            if 'x4' in mn or 'x3' in mn:
                d['sdata'].update(R(ops[0] if mn.startswith('buffer') else ops[1]))
            if 'atomic' in mn and 'sc0' in mods.split():
                d['w'].update(R(ops[0]))
        elif mn.startswith(('ds_read', 'ds_bpermute', 'ds_permute', 'ds_swizzle')):
            d['kind'] = 'ds'; d['w'].update(R(ops[0])); rd(ops[1:])
        elif mn.startswith('ds_'):
            d['kind'] = 'ds'; rd(ops)
        elif mn.startswith('s_'):
            d['kind'] = 'salu'
            if mn.startswith(('s_cmp', 's_cbranch', 's_branch', 's_waitcnt', 's_barrier', 's_nop', 's_endpgm', 's_sleep', 's_setprio', 's_bitcmp')):
                rd(ops)
            else:
                if ops: d['w'].update(R(ops[0]))
                rd(ops[1:])
                if 'saveexec' in mn: d['w'].add(('s', 'exec'))
        return d

    def need(self, c):
        req = 0
        n = len(self.hist)
        for dist in range(0, min(n, 20)):
            p = self.hist[n - 1 - dist]
            if p is None: continue
            w = 0
            pv = {x for x in p['w'] if x[0] in 'va'}
            ps = {x for x in p['w'] if x[0] == 's'}
            if p['kind'] == 'valu':
                if c['kind'] == 'mfma' and pv & c['r']: w = max(w, 2)
                if c['kind'] == 'mfma' and ('s', 'exec') in ps: w = max(w, 4)
                if c['kind'] == 'vmem' and ps & c['r']: w = max(w, 5)
                if c['kind'] == 'valu' and ps & c['r']: w = max(w, 4 if c.get('rl') else 2)
                if c['kind'] == 'salu' and ps & c['r']: w = max(w, 2)
                if c.get('rl') and pv & c['r']: w = max(w, 1)
                if c.get('perm') and pv & c['r']: w = max(w, 2)
                if c.get('dpp') and pv & c['r']: w = max(w, 2)
                if (c.get('dpp')) and ('s', 'exec') in ps: w = max(w, 5)
                if (c.get('rl') or c.get('perm')) and ('s', 'exec') in ps: w = max(w, 4)
                if p.get('trans') and c['kind'] in ('valu', 'mfma', 'vmem', 'ds') and not c.get('trans') and pv & c['r']: w = max(w, 1)
                if p.get('sel') and c['kind'] == 'valu' and pv & (c['r'] | c['w']): w = max(w, 1)
                if p.get('dot') and pv & (c['r'] | c['w']):
                    if not (c.get('dot') and c['mn'] == p['mn'] and not (pv & (c['r'] - c['w']))): w = max(w, 3)
            if p['kind'] == 'mfma':
                P = p['passes']
                if c['kind'] == 'mfma':
                    if pv & c['ab']: w = max(w, {4: 8, 8: 12}[P])
                    if pv & c['srcc']:
                        if not (c['srcc'] == pv and c['passes'] == P): w = max(w, {4: 6, 8: 10}[P])
                    elif pv & c['w']: w = max(w, {4: 8, 8: 12}[P])
                elif c['kind'] in ('valu', 'vmem', 'ds'):
                    if pv & (c['r'] | c['w']): w = max(w, {4: 8, 8: 12}[P])
                    if c['kind'] == 'valu' and p['srcc'] & c['w']: w = max(w, {4: 3, 8: 7}[P])
            if p['kind'] == 'salu':
                if ('s', 'm0') in ps and c.get('ldsdma'): w = max(w, 1)
            if p['kind'] == 'vmem' and p['sdata'] & c['w']:
                w = max(w, 2 if c['kind'] == 'valu' else 1)
            req = max(req, w - dist)
        return req

    def __call__(self, ins, comment=None):
        for one in ins.split('\n'):
            one = one.strip()
            if not one: continue
            if one.endswith(':') or one.startswith('.') or one.startswith(';'):
                self.lines.append(one); continue
            c = self.classify(one)
            k = self.need(c)
            while k > 0:
                n = min(k, 16)
                self.lines.append(f'  s_nop {n-1}')
                self.hist += [None] * n
                k -= n
            self.lines.append('  ' + one + (f'   ; {comment}' if comment else ''))
            if c['mn'] == 's_nop':
                self.hist += [None] * (int(one.split()[1]) + 1)
            else:
                self.hist.append(c)
            self.hist = self.hist[-40:]

    def label(self, name):
        self.lines.append(name + ':')

    def flush_hazards(self, n=12):
        self(f's_nop {n-1}')

    def newlabel(self, p='L'):
        self.uid += 1
        return f'{p}_{self.uid}'

    def text(self):
        return '\n'.join(self.lines) + '\n'


class Alloc:
    def __init__(self, prefix, start, limit):
        self.p = prefix; self.n = start; self.limit = limit; self.hi = start
    def get(self, cnt=1, align=1):
        self.n = (self.n + align - 1) // align * align
        b = self.n; self.n += cnt
        assert self.n <= self.limit, f'out of {self.p} regs: {self.n}'
        self.hi = max(self.hi, self.n)
        return b

def vr(b, n=1, p='v'):
    return f'{p}{b}' if n == 1 else f'{p}[{b}:{b+n-1}]'
def sr(b, n=1):
    return vr(b, n, 's')
def f2u(x):
    import struct
    return struct.unpack('<I', struct.pack('<f', x))[0]
```

```python
import sys, math
from asmlib import Emit, Alloc, vr, sr, f2u

NAME = 'parallel_sum__sliding_block__mixer_token_mlp__prompt'
HT_OFF, HT_LD = 0x0, 4224
GE_OFF, GE_LD = 0x260000, 10368
OT_OFF = 0x820000
QB_OFF = 0xA60000
KB_OFF = 0xCA0000
X2_REL = 0x200000
VT_OFF, VT_LD = 0xEE0000, 577 * 32
PART_OFF = 0x1130000
FLAG_OFF = 0x2330000
WS_USED = 0x2340000
X_BYTES = 2048 * 576 * 2
WQKV_BYTES = 576 * 1728 * 2
WO_BYTES = 576 * 576 * 2
W1_BYTES = 2048 * 4608 * 2
ONES = 0x3F803F80

def srd(e, d, lo, nbytes):
    e(f's_mov_b32 s{d}, s{lo}')
    e(f's_and_b32 s{d+1}, s{lo+1}, 0xffff')
    e(f's_mov_b32 s{d+2}, {nbytes}')
    e(f's_mov_b32 s{d+3}, 0x20000')

def header(e, name):
    e('.p2align 8'); e(f'.globl {name}'); e(f'.type {name},@function'); e(f'{name}:')
    e.hist = []

def descriptor(name, nv, ns=96):
    acc = (nv + 3) // 4 * 4
    return f'''.p2align 6
.amdhsa_kernel {name}
  .amdhsa_next_free_vgpr {nv}
  .amdhsa_next_free_sgpr {ns}
  .amdhsa_accum_offset {acc}
  .amdhsa_group_segment_fixed_size 0
  .amdhsa_kernarg_size 88
  .amdhsa_user_sgpr_count 2
  .amdhsa_user_sgpr_kernarg_segment_ptr 1
  .amdhsa_system_sgpr_workgroup_id_x 1
.end_amdhsa_kernel
'''

def rbf(e, v):
    e(f'v_cvt_pk_bf16_f32 v{v}, v{v}, v{v}')
    e(f'v_lshlrev_b32 v{v}, 16, v{v}')

def ln_scalars(e, mean, var, tmp):
    rbf(e, mean)
    rbf(e, var)
    e(f'v_add_f32 v{var}, {hex(f2u(1e-5))}, v{var}')
    rbf(e, var)
    e(f'v_sqrt_f32 v{var}, v{var}')
    rbf(e, var)
    e(f'v_rcp_f32 v{var}, v{var}')

K0_SLOT = 18432
K0_CS = 8 * K0_SLOT
K0_ST = K0_CS + 1024
K0_LDS = K0_ST + 1024

def gen_k0(e):
    name = 'k0_ln_qkv_kernel'
    header(e, name)
    SX, SW, SWS, SWO = 8, 12, 16, 20
    e('s_cmp_ge_u32 s2, 256'); e('s_cbranch_scc1 k0_exit')
    e('s_load_dwordx4 s[24:27], s[0:1], 0')
    e('s_load_dwordx2 s[28:29], s[0:1], 16')
    e('s_load_dwordx2 s[30:31], s[0:1], 80')
    e('v_lshrrev_b32 v1, 6, v0')
    e('v_and_b32 v0, 63, v0')
    e('v_readfirstlane_b32 s3, v1')
    e('s_and_b32 s4, s2, 7')
    e('s_lshr_b32 s5, s2, 3')
    e('s_waitcnt lgkmcnt(0)')
    srd(e, SX, 24, X_BYTES); srd(e, SW, 26, WQKV_BYTES); srd(e, SWO, 28, WO_BYTES); srd(e, SWS, 30, WS_USED)
    e('s_cmp_ge_u32 s5, 24'); e('s_cbranch_scc1 k0_ln')
    e('s_lshr_b32 s6, s4, 1'); e('s_lshl_b32 s6, s6, 2'); e('s_and_b32 s7, s5, 3'); e('s_add_u32 s6, s6, s7')
    e('s_and_b32 s7, s4, 1'); e('s_mul_i32 s7, s7, 6'); e('s_lshr_b32 s32, s5, 2'); e('s_add_u32 s7, s7, s32')
    e('s_cmp_ge_u32 s3, 4'); e('s_cbranch_scc1 k0_loader')

    NXR, NWR, PF = 13, 6, 4
    A = Alloc('v', 1, 256)
    vxo = A.get(2)
    vwa = A.get(3)
    vt = A.get(6)
    st = A.get(4, 2)
    vad = A.get(18)
    acc = A.get(72, 4)
    wr = A.get(NWR * 4, 4)
    xr = A.get(NXR * 8, 4)
    e('s_lshl_b32 s32, s6, 7'); e('s_lshl_b32 s33, s3, 5'); e('s_add_u32 s32, s32, s33')
    e(f'v_and_b32 v{vt}, 15, v0')
    e(f'v_lshrrev_b32 v{vt+1}, 4, v0')
    e(f'v_add_u32 v{vt+2}, s32, v{vt}')
    e(f'v_mul_u32_u24 v{vxo}, 1152, v{vt+2}')
    e(f'v_lshl_add_u32 v{vxo}, v{vt+1}, 4, v{vxo}')
    e(f'v_add_u32 v{vxo+1}, {16*1152}, v{vxo}')
    def xreg(ks, rt): return xr + ((ks % NXR) * 2 + rt) * 4
    vm = []
    def xload(ks):
        for rt in range(2):
            e(f'buffer_load_dwordx4 {vr(xreg(ks,rt),4)}, v{vxo+rt}, s[{SX}:{SX+3}], 0 offen offset:{ks*64}')
            vm.append(('x', ks))
    for ks in range(NXR): xload(ks)
    e(f'v_lshrrev_b32 v{vt+3}, 5, v0')
    e(f'v_lshlrev_b32 v{vt+3}, 4, v{vt+3}')
    e(f'v_and_b32 v{vt+4}, 1, v{vt+1}')
    e(f'v_lshl_add_u32 v{vt+3}, v{vt+4}, 2, v{vt+3}')
    e(f'v_bfe_u32 v{vt+4}, v0, 2, 2')
    e(f'v_add_u32 v{vt+3}, v{vt+3}, v{vt+4}')
    e(f'v_mul_u32_u24 v{vwa}, 288, v{vt+3}')
    e(f'v_and_b32 v{vt+4}, 3, v0')
    e(f'v_lshl_add_u32 v{vwa}, v{vt+4}, 3, v{vwa}')
    e(f'v_add_u32 v{vwa+1}, {3*K0_SLOT}, v{vwa}')
    e(f'v_add_u32 v{vwa+2}, {6*K0_SLOT}, v{vwa}')
    for i in range(4): e(f'v_mov_b32 v{st+i}, 0')
    e(f's_mov_b32 s34, {hex(ONES)}')
    e('s_and_b32 s35, s7, 3')
    e('s_cmp_ge_u32 s7, 8'); e('s_cbranch_scc1 k0_cv')
    hist0 = list(e.hist); vm0 = list(vm)

    for variant in ('qk', 'v'):
        vm = list(vm0)
        if variant == 'v':
            e.label('k0_cv'); e.hist = list(hist0)
            e('s_lshr_b32 s36, s32, 5'); e(f's_mul_i32 s36, s36, {2*VT_LD}'); e(f's_add_u32 s36, s36, {VT_OFF}')
            e(f's_mul_i32 s37, s35, {144*32}'); e('s_add_u32 s36, s36, s37')
            e(f'v_lshlrev_b32 v{vad}, 5, v{vt}')
            e(f'v_and_b32 v{vt+4}, 1, v{vt+1}')
            e(f'v_lshl_add_u32 v{vad}, v{vt+4}, 4, v{vad}')
            e(f'v_lshrrev_b32 v{vt+4}, 1, v{vt+1}')
            e(f'v_lshl_add_u32 v{vad}, v{vt+4}, 3, v{vad}')
            e(f'v_add_u32 v{vad}, s36, v{vad}')
        else:
            e(f's_mov_b32 s36, {QB_OFF}'); e(f's_mov_b32 s37, {KB_OFF}')
            e('s_cmp_ge_u32 s7, 4'); e('s_cselect_b32 s36, s37, s36')
            e('s_lshl_b32 s37, s35, 2')
            e(f'v_lshlrev_b32 v{vt+3}, 5, v{vt+2}')
            e(f'v_lshlrev_b32 v{vt+4}, 3, v{vt+2}')
            t0, t1, t2 = acc, acc + 1, acc + 2
            for nt in range(9):
                e(f'v_add_u32 v{t0}, {4*nt}, v{vt+1}')
                e(f'v_mul_u32_u24 v{t1}, 57, v{t0}')
                e(f'v_lshrrev_b32 v{t1}, 9, v{t1}')
                e(f'v_mul_u32_u24 v{t2}, 9, v{t1}')
                e(f'v_sub_u32 v{t0}, v{t0}, v{t2}')
                e(f'v_add_u32 v{t1}, s37, v{t1}')
                e(f'v_cmp_lt_u32 vcc, 4, v{t0}')
                e(f'v_lshlrev_b32 v{t2}, 17, v{t1}')
                e(f'v_lshl_add_u32 v{t2}, v{t0}, 3, v{t2}')
                e(f'v_add_u32 v{t2}, v{t2}, v{vt+3}')
                e(f'v_add_u32 v{vad+nt}, {65536-40}, v{t2}')
                e(f'v_cndmask_b32 v{t2}, v{t2}, v{vad+nt}, vcc')
                e(f'v_cmp_eq_u32 vcc, 4, v{t0}')
                e(f'v_lshlrev_b32 v{t1}, 14, v{t1}')
                e(f'v_add_u32 v{t1}, {X2_REL}, v{t1}')
                e(f'v_add_u32 v{t1}, v{t1}, v{vt+4}')
                e(f'v_cndmask_b32 v{vad+nt}, v{t2}, v{t1}, vcc')
                e(f'v_mov_b32 v{t0}, 512')
                e(f'v_mov_b32 v{t1}, 128')
                e(f'v_cndmask_b32 v{t0}, v{t0}, v{t1}, vcc')
                e(f'v_add_u32 v{vad+9+nt}, v{vad+nt}, v{t0}')
        NF = 162
        def wread(F):
            ks, nt = divmod(F, 9)
            stage, kk = divmod(ks, 2)
            slot = stage % 8
            base = vwa + slot // 3
            off = (slot % 3) * K0_SLOT + kk * 9216 + nt * 32
            d = wr + (F % NWR) * 4
            if nt == 0 and kk == 0: e('s_barrier')
            e(f'ds_read_b64_tr_b16 {vr(d,2)}, v{base} offset:{off}')
            e(f'ds_read_b64_tr_b16 {vr(d+2,2)}, v{base} offset:{off+2304}')
        for F in range(PF): wread(F)
        for F in range(NF):
            ks, nt = divmod(F, 9)
            if F + PF < NF: wread(F + PF)
            if nt == 0:
                last = max(i for i, t in enumerate(vm) if t == ('x', ks))
                e(f's_waitcnt vmcnt({len(vm)-1-last})')
            outst = min(PF, NF - 1 - F) * 2
            e(f's_waitcnt lgkmcnt({outst})')
            w = vr(wr + (F % NWR) * 4, 4)
            for rt in range(2):
                a = vr(acc + (nt * 2 + rt) * 4, 4)
                x = vr(xreg(ks, rt), 4)
                c = '0' if ks == 0 else a
                if variant == 'qk': e(f'v_mfma_f32_16x16x32_bf16 {a}, {w}, {x}, {c}')
                else: e(f'v_mfma_f32_16x16x32_bf16 {a}, {x}, {w}, {c}')
                if nt < 8:
                    r2, j = divmod(nt, 4)
                    xx = xreg(ks, r2) + j
                    if rt == 0: e(f'v_dot2c_f32_bf16 v{st+r2}, s34, v{xx}')
                    else: e(f'v_dot2c_f32_bf16 v{st+2+r2}, v{xx}, v{xx}')
            if nt == 8 and ks + NXR < 18: xload(ks + NXR)
        for i in range(4):
            e(f'v_mov_b32 v{vt+3}, v{st+i}')
            e(f'v_permlane16_swap_b32 v{st+i}, v{vt+3}')
            e(f'v_add_f32 v{st+i}, v{st+i}, v{vt+3}')
            e(f'v_mov_b32 v{vt+3}, v{st+i}')
            e(f'v_permlane32_swap_b32 v{st+i}, v{vt+3}')
            e(f'v_add_f32 v{st+i}, v{st+i}, v{vt+3}')
        inv = hex(f2u(1.0 / 576))
        for rt in range(2):
            e(f'v_mul_f32 v{st+rt}, {inv}, v{st+rt}')
            e(f'v_mul_f32 v{st+2+rt}, {inv}, v{st+2+rt}')
            e(f'v_fma_f32 v{st+2+rt}, -v{st+rt}, v{st+rt}, v{st+2+rt}')
            e(f'v_max_f32 v{st+2+rt}, 0, v{st+2+rt}')
            ln_scalars(e, st + rt, st + 2 + rt, vt + 3)
        e('s_barrier')
        cs = xr
        if variant == 'qk':
            e(f'v_lshlrev_b32 v{vt+3}, 4, v{vt+1}')
            e(f'v_add_u32 v{vt+3}, {K0_CS}, v{vt+3}')
            for nt in range(9):
                e(f'ds_read_b128 {vr(cs+nt*4,4)}, v{vt+3} offset:{nt*64}')
            mm = cs + 36
            for rt in range(2):
                e(f'v_sub_f32 v{mm+rt*4}, 0, v{st+rt}')
                e(f'v_mov_b32 v{mm+rt*4+2}, v{st+2+rt}')
            for nt in range(9):
                e(f's_waitcnt lgkmcnt({8-nt})')
                for rt in range(2):
                    a = acc + (nt * 2 + rt) * 4
                    for h in range(2):
                        e(f'v_pk_fma_f32 {vr(a+2*h,2)}, {vr(cs+nt*4+2*h,2)}, {vr(mm+rt*4,2)}, {vr(a+2*h,2)} op_sel_hi:[1,0,1]')
                    for h in range(2):
                        e(f'v_pk_mul_f32 {vr(a+2*h,2)}, {vr(a+2*h,2)}, {vr(mm+rt*4+2,2)} op_sel_hi:[1,0]')
                    e(f'v_cvt_pk_bf16_f32 v{a}, v{a}, v{a+1}')
                    e(f'v_cvt_pk_bf16_f32 v{a+1}, v{a+2}, v{a+3}')
                    e(f'buffer_store_dwordx2 {vr(a,2)}, v{vad+rt*9+nt}, s[{SWS}:{SWS+3}], s36 offen')
        else:
            e(f's_lshl_b32 s37, s3, 8'); e(f's_add_u32 s37, s37, {K0_ST}')
            e(f'v_lshlrev_b32 v{vt+3}, 2, v{vt}')
            e(f'v_add_u32 v{vt+3}, s37, v{vt+3}')
            for rt in range(2):
                e(f'v_sub_f32 v{st+rt}, 0, v{st+rt}')
                e(f'ds_write_b32 v{vt+3}, v{st+rt} offset:{rt*64}')
                e(f'ds_write_b32 v{vt+3}, v{st+2+rt} offset:{128+rt*64}')
            e(f'v_lshlrev_b32 v{vt+4}, 4, v{vt+1}')
            e(f'v_add_u32 v{vt+4}, s37, v{vt+4}')
            e(f'v_lshlrev_b32 v{vt+3}, 2, v{vt}')
            e(f'v_add_u32 v{vt+3}, {K0_CS}, v{vt+3}')
            e('s_waitcnt lgkmcnt(0)')
            mm = cs + 20
            for rt in range(2):
                e(f'ds_read_b128 {vr(mm+rt*4,4)}, v{vt+4} offset:{rt*64}')
                e(f'ds_read_b128 {vr(mm+8+rt*4,4)}, v{vt+4} offset:{128+rt*64}')
            for nt in range(9):
                e(f'ds_read_b32 v{cs+2*nt}, v{vt+3} offset:{nt*64}')
            e(f's_mov_b32 s38, {VT_LD}'); e(f's_mov_b32 s39, 4096'); e(f's_mov_b32 s40, {VT_LD+4096}')
            for nt in range(9):
                e(f's_waitcnt lgkmcnt({8-nt})')
                for rt in range(2):
                    a = acc + (nt * 2 + rt) * 4
                    for h in range(2):
                        e(f'v_pk_fma_f32 {vr(a+2*h,2)}, {vr(mm+rt*4+2*h,2)}, {vr(cs+2*nt,2)}, {vr(a+2*h,2)} op_sel_hi:[1,0,1]')
                    for h in range(2):
                        e(f'v_pk_mul_f32 {vr(a+2*h,2)}, {vr(a+2*h,2)}, {vr(mm+8+rt*4+2*h,2)}')
                    e(f'v_cvt_pk_bf16_f32 v{a}, v{a}, v{a+1}')
                    e(f'v_cvt_pk_bf16_f32 v{a+1}, v{a+2}, v{a+3}')
                    so = {(0, 0): '0', (1, 0): 's38', (0, 1): 's39', (1, 1): 's40'}[(rt, nt // 8)]
                    e(f'buffer_store_dwordx2 {vr(a,2)}, v{vad}, s[{SWS}:{SWS+3}], {so} offen offset:{(nt%8)*512}')
        e('s_endpgm')

    e.label('k0_loader'); e.hist = []
    e('s_sub_u32 s33, s3, 4')
    e('s_mul_i32 s34, s33, 5'); e('s_lshl_b32 s35, s33, 2'); e('s_add_u32 s35, s35, 2')
    e('s_cmp_lt_u32 s33, 2'); e('s_cselect_b32 s34, s34, s35')
    e('s_lshl_b32 s35, s34, 6')
    vo = 8
    for n in range(5):
        e(f'v_add_u32 v1, s35, v0')
        if n: e(f'v_add_u32 v1, {64*n}, v1')
        e('v_mul_u32_u24 v2, 3641, v1'); e('v_lshrrev_b32 v2, 16, v2')
        e('v_mul_u32_u24 v3, 18, v2'); e('v_sub_u32 v3, v1, v3')
        e('v_and_b32 v4, 0x33, v2'); e('v_bfe_u32 v5, v2, 2, 1'); e('v_lshl_or_b32 v4, v5, 3, v4')
        e('v_bfe_u32 v5, v2, 3, 1'); e('v_lshl_or_b32 v4, v5, 2, v4')
        e('v_mul_u32_u24 v4, 3456, v4')
        e(f'v_lshl_add_u32 v{vo+n}, v3, 4, v4')
    e('s_mul_i32 s36, s7, 288')
    e('s_lshl_b32 s37, s34, 10')
    e('v_lshrrev_b32 v1, 5, v0'); e('v_lshlrev_b32 v1, 4, v1'); e('v_bfe_u32 v2, v0, 4, 1'); e('v_lshl_add_u32 v1, v2, 2, v1')
    e('v_bfe_u32 v2, v0, 2, 2'); e('v_add_u32 v1, v1, v2'); e('v_mul_u32_u24 v13, 288, v1')
    e('v_and_b32 v2, 3, v0'); e('v_lshl_add_u32 v13, v2, 3, v13'); e('s_lshl_b32 s38, s33, 5'); e('v_add_u32 v13, s38, v13')
    e(f'v_add_u32 v14, {3*K0_SLOT}, v13'); e(f'v_add_u32 v15, {6*K0_SLOT}, v13')
    for i in range(4): e(f'v_mov_b32 v{16+i}, {hex(ONES)}')
    for i in range(12): e(f'v_mov_b32 v{20+i}, 0')
    e('s_cmp_ge_u32 s33, 2'); e('s_cbranch_scc1 k0_ld4')
    hist0 = list(e.hist)
    for cnt in (5, 4):
        if cnt == 4: e.label('k0_ld4'); e.hist = list(hist0)
        def issue(stage):
            slot = stage % 8
            e(f's_add_u32 s39, s36, {stage*64*3456}')
            for n in range(cnt):
                e(f's_add_u32 m0, s37, {slot*K0_SLOT + n*1024}')
                e(f'buffer_load_dwordx4 v{vo+n}, s[{SW}:{SW+3}], s39 offen lds')
        for stg in range(8): issue(stg)
        issued = 8
        for j in range(9):
            e(f's_waitcnt vmcnt({cnt*(issued-1-j)})')
            e('s_barrier')
            if j == 2: issue(8); issued = 9
            slot = j % 8
            base = 13 + slot // 3
            lab = e.newlabel('k0_t3')
            for kk in range(2):
                for ti in range(2):
                    off = (slot % 3) * K0_SLOT + kk * 9216 + ti * 128
                    d = 32 + (kk * 2 + ti) * 4
                    e(f'ds_read_b64_tr_b16 {vr(d,2)}, v{base} offset:{off}')
                    e(f'ds_read_b64_tr_b16 {vr(d+2,2)}, v{base} offset:{off+2304}')
            e('s_waitcnt lgkmcnt(0)')
            for kk in range(2):
                for ti in range(2):
                    d = 32 + (kk * 2 + ti) * 4
                    e(f'v_mfma_f32_16x16x32_bf16 {vr(20+ti*4,4)}, v[16:19], {vr(d,4)}, {vr(20+ti*4,4)}')
            if cnt == 4:
                e('s_cmp_eq_u32 s33, 3'); e(f's_cbranch_scc0 {lab}')
                for kk in range(2):
                    off = (slot % 3) * K0_SLOT + kk * 9216 + 160
                    d = 48 + kk * 4
                    e(f'ds_read_b64_tr_b16 {vr(d,2)}, v{base} offset:{off}')
                    e(f'ds_read_b64_tr_b16 {vr(d+2,2)}, v{base} offset:{off+2304}')
                e('s_waitcnt lgkmcnt(0)')
                for kk in range(2):
                    e(f'v_mfma_f32_16x16x32_bf16 v[28:31], v[16:19], {vr(48+kk*4,4)}, v[28:31]')
                e.label(lab)
        e('v_and_b32 v1, 15, v0'); e('v_lshlrev_b32 v1, 2, v1'); e('s_lshl_b32 s38, s33, 6'); e(f's_add_u32 s38, s38, {K0_CS}')
        e('v_add_u32 v1, s38, v1')
        e('s_nop 7')
        e('ds_write_b32 v1, v20'); e('ds_write_b32 v1, v24 offset:256')
        if cnt == 4:
            lab = e.newlabel('k0_t3w')
            e('s_cmp_eq_u32 s33, 3'); e(f's_cbranch_scc0 {lab}')
            e(f'ds_write_b32 v1, v28 offset:{512-192}')
            e.label(lab)
        e('s_waitcnt lgkmcnt(0)')
        e('s_barrier')
        e('s_endpgm')

    e.label('k0_ln'); e.hist = []
    LD = 1184
    e('s_lshl_b32 s6, s4, 3'); e('s_add_u32 s6, s6, s5'); e('s_sub_u32 s6, s6, 24')
    e('v_lshrrev_b32 v1, 4, v0'); e('v_and_b32 v2, 15, v0')
    e('s_lshl_b32 s7, s3, 2'); e('v_add_u32 v3, s7, v1')
    e('v_mul_u32_u24 v4, 1152, v3'); e('v_lshl_add_u32 v4, v2, 3, v4')
    e(f'v_mul_u32_u24 v5, {LD}, v3'); e('v_lshl_add_u32 v5, v2, 3, v5')
    e(f's_mul_i32 s32, s6, {32*1152}')
    xp, wp, xf = 16, 34, 52
    for c in range(9):
        e(f'buffer_load_dwordx2 {vr(xp+2*c,2)}, v4, s[{SX}:{SX+3}], s32 offen offset:{c*128}')
    for c in range(9):
        e(f'buffer_load_dwordx2 {vr(wp+2*c,2)}, v4, s[{SWO}:{SWO+3}], s32 offen offset:{c*128}')
    e('v_mov_b32 v8, 0'); e('v_mov_b32 v9, 0'); e('v_mov_b32 v10, 0'); e('v_mov_b32 v11, 0')
    e('v_lshlrev_b32 v6, 4, v0')
    e('s_lshl_b32 s33, s6, 10'); e(f's_add_u32 s33, s33, {FLAG_OFF}')
    e('s_cmp_eq_u32 s3, 0'); e('s_cbranch_scc0 k0_ln_nf')
    e(f'buffer_store_dwordx4 v[8:11], v6, s[{SWS}:{SWS+3}], s33 offen')
    e.label('k0_ln_nf')
    for i in range(4): e(f'v_mov_b32 v{12+i}, {hex(ONES)}')
    e('v_bfe_u32 v6, v0, 1, 1'); e(f'v_mul_u32_u24 v6, {VT_LD}, v6'); e('v_and_b32 v7, 1, v0'); e('v_lshl_add_u32 v6, v7, 4, v6')
    e(f's_mul_i32 s33, s6, {2*VT_LD}'); e(f's_add_u32 s33, s33, {VT_OFF + 576*32}')
    e('s_cmp_eq_u32 s3, 1'); e('s_cbranch_scc0 k0_ln_no')
    e(f'buffer_store_dwordx4 v[12:15], v6, s[{SWS}:{SWS+3}], s33 offen')
    e.label('k0_ln_no')
    e('s_waitcnt vmcnt(9)')
    def unpack():
        for i in range(18):
            e(f'v_lshlrev_b32 v{xf+2*i}, 16, v{xp+i}')
            e(f'v_and_b32 v{xf+2*i+1}, 0xffff0000, v{xp+i}')
    def allred(v):
        for m in ('quad_perm:[1,0,3,2]', 'quad_perm:[2,3,0,1]', 'row_half_mirror', 'row_mirror'):
            e(f'v_add_f32_dpp v{v}, v{v}, v{v} {m} row_mask:0xf bank_mask:0xf')
    inv = hex(f2u(1.0 / 576))
    for rep in range(2):
        unpack()
        e(f'v_pk_add_f32 v[8:9], {vr(xf,2)}, {vr(xf+2,2)}')
        e(f'v_pk_add_f32 v[10:11], {vr(xf+4,2)}, {vr(xf+6,2)}')
        for i in range(4, 18):
            t = 8 + 2 * (i & 1)
            e(f'v_pk_add_f32 {vr(t,2)}, {vr(t,2)}, {vr(xf+2*i,2)}')
        e('v_pk_add_f32 v[8:9], v[8:9], v[10:11]')
        e('v_add_f32 v8, v8, v9')
        allred(8)
        e(f'v_mul_f32 v12, {inv}, v8')
        e('v_sub_f32 v14, 0, v12')
        e('v_mov_b32 v8, 0'); e('v_mov_b32 v9, 0'); e('v_mov_b32 v10, 0'); e('v_mov_b32 v11, 0')
        for i in range(18):
            t = 8 + 2 * (i & 1); d = 88 + 2 * (i & 1)
            e(f'v_pk_add_f32 {vr(d,2)}, {vr(xf+2*i,2)}, v[14:15] op_sel_hi:[1,0]')
            e(f'v_pk_fma_f32 {vr(t,2)}, {vr(d,2)}, {vr(d,2)}, {vr(t,2)}')
        e('v_pk_add_f32 v[8:9], v[8:9], v[10:11]')
        e('v_add_f32 v8, v8, v9')
        allred(8)
        e(f'v_mul_f32 v10, {inv}, v8')
        ln_scalars(e, 12, 10, 8)
        e('v_sub_f32 v14, 0, v12')
        for i in range(18):
            e(f'v_pk_add_f32 {vr(xf+2*i,2)}, {vr(xf+2*i,2)}, v[14:15] op_sel_hi:[1,0]')
            e(f'v_cvt_pk_bf16_f32 v{xp+i}, v{xf+2*i}, v{xf+2*i+1}')
        unpack()
        for i in range(18):
            e(f'v_pk_mul_f32 {vr(xf+2*i,2)}, {vr(xf+2*i,2)}, v[10:11] op_sel_hi:[1,0]')
            e(f'v_cvt_pk_bf16_f32 v{xp+i}, v{xf+2*i}, v{xf+2*i+1}')
    T2 = 32 * LD
    for c in range(9): e(f'ds_write_b64 v5, {vr(xp+2*c,2)} offset:{c*128}')
    e('s_waitcnt vmcnt(0)')
    e(f'v_add_u32 v5, {T2}, v5')
    for c in range(9): e(f'ds_write_b64 v5, {vr(wp+2*c,2)} offset:{c*128}')
    e('v_lshlrev_b32 v6, 3, v1'); e('v_bfe_u32 v7, v0, 2, 2'); e('v_add_u32 v6, v6, v7'); e(f'v_mul_u32_u24 v6, {LD}, v6')
    e('v_and_b32 v7, 3, v0'); e('v_lshl_add_u32 v6, v7, 3, v6'); e('s_lshl_b32 s33, s3, 5'); e('v_add_u32 v6, s33, v6')
    e('s_lshl_b32 s33, s3, 4'); e('v_add_u32 v7, s33, v2')
    e(f'v_mul_u32_u24 v8, {HT_LD}, v7'); e('v_lshl_add_u32 v8, v1, 4, v8')
    e(f'v_mul_u32_u24 v9, {GE_LD}, v7'); e('v_lshl_add_u32 v9, v1, 4, v9')
    e('s_waitcnt lgkmcnt(0)')
    e('s_barrier')
    for job in range(2):
        if job == 1:
            e('s_cmp_ge_u32 s6, 18'); e('s_cbranch_scc1 k0_exit')
            e(f'v_add_u32 v6, {T2}, v6')
        base, ld, va = ((HT_OFF, HT_LD, 8), (GE_OFF + 4608 * 2, GE_LD, 9))[job]
        e('s_lshl_b32 s33, s6, 6'); e(f's_add_u32 s33, s33, {base}')
        lab = e.newlabel('k0_tr')
        for j in range(5):
            if j == 4:
                e('s_cmp_ge_u32 s3, 4'); e(f's_cbranch_scc1 {lab}')
            d = 16 + j * 4
            e(f'ds_read_b64_tr_b16 {vr(d,2)}, v6 offset:{j*256}')
            e(f'ds_read_b64_tr_b16 {vr(d+2,2)}, v6 offset:{j*256 + 4*LD}')
            e(f's_add_u32 s34, s33, {j*128*ld}')
            e('s_waitcnt lgkmcnt(0)')
            e(f'buffer_store_dwordx4 {vr(d,4)}, v{va}, s[{SWS}:{SWS+3}], s34 offen')
        e.label(lab)
        e('s_nop 1')
    e.label('k0_exit')
    e('s_endpgm')
    return name, 256, K0_LDS
```

```python
import math
from asmlib import Emit, Alloc, vr, sr, f2u
from gen import *

K1_SLOT = 28672
SW1, SWS, SB1 = 8, 12, 16
MSK = 40
LOG2E = 1.4426950408889634

def attn(e, tag, coupled, nbar_pts):
    A = Alloc('v', 1, 256)
    vK1 = A.get(); vK2 = A.get(); vVl = A.get(); vVm = A.get(); vV = A.get(); vO = A.get(); vO2 = A.get()
    q2r = A.get(); vm_ = A.get(); t0 = A.get(); nm = A.get(2, 2); cc = A.get(2, 2)
    PM = A.get(8); K2 = A.get(6, 2); Q1 = A.get(4, 4); Q2 = A.get(8, 2); KD = A.get(4, 4)
    VR = A.get(56, 4); T = A.get(144, 4)
    Tt = lambda t: T + 16 * t
    kloc = {2: Tt(1) + 8, 3: Tt(1) + 12, 4: Tt(2) + 8, 5: Tt(2) + 12, 6: Tt(3) + 8, 7: Tt(3) + 12, 8: Tt(4) + 8, 0: Tt(4) + 12, 1: KD}
    vloc = {0: VR, 8: VR + 8, 1: VR + 16, 2: VR + 24, 3: VR + 32, 4: VR + 40, 5: VR + 48, 6: VR, 7: VR + 8}
    ws = f's[{SWS}:{SWS+3}]'
    e(f'v_and_b32 v{t0}, 31, v0'); e(f'v_lshrrev_b32 v{vm_}, 5, v0')
    e(f'v_lshlrev_b32 v{vK1}, 5, v{t0}'); e(f'v_lshl_add_u32 v{vK1}, v{vm_}, 4, v{vK1}')
    e(f'v_lshlrev_b32 v{vK2}, 3, v{t0}'); e(f'v_lshl_add_u32 v{vK2}, v{vm_}, 8, v{vK2}')
    e(f'v_cmp_gt_u32 vcc, 18, v{t0}')
    e(f'v_lshlrev_b32 v{vVl}, 4, v{vm_}'); e(f'v_add_u32 v{vVl}, {576*32}, v{vVl}')
    e(f'v_cndmask_b32 v{vVl}, v{vVl}, v{vK1}, vcc')
    e(f'v_mov_b32 v{vV}, 576'); e(f'v_cndmask_b32 v{vVm}, 0, v{vV}, vcc')
    e(f'v_lshlrev_b32 v{vO}, 1, v{t0}'); e(f'v_lshl_add_u32 v{vO}, v{vm_}, 14, v{vO}')
    e(f'v_lshl_add_u32 v{vO2}, v{vm_}, 30, v{vO}')
    e(f'v_lshlrev_b32 v{nm}, 2, v{vm_}'); e(f'v_sub_u32 v{nm}, v{t0}, v{nm}')
    for r in range(16):
        e(f'v_cmp_gt_i32 s[{MSK+2*r}:{MSK+2*r+1}], {8*(r>>2)+(r&3)}, v{nm}')
    e(f'v_mov_b32 v{nm}, 0xffff'); e(f'v_mov_b32 v{nm+1}, 0xffff0000')
    for i in range(8):
        e(f'v_cndmask_b32 v{PM+i}, 0, v{nm}, s[{MSK+4*i}:{MSK+4*i+1}]')
        e(f'v_cndmask_b32 v{t0}, 0, v{nm+1}, s[{MSK+4*i+2}:{MSK+4*i+3}]')
        e(f'v_or_b32 v{PM+i}, v{PM+i}, v{t0}')
    for i in (1, 3, 4, 6): e(f'v_mov_b32 v{Q2+i}, 0')
    e(f'v_mov_b32 v{K2+5}, 0')
    e(f'v_cmp_gt_u32 s[72:73], 32, v0')
    c = 18 ** -0.5 * LOG2E
    e(f'v_mov_b32 v{cc}, {hex(f2u(c))}')
    e('s_mov_b32 s38, 0xff800000')
    def kaddr(sj):
        e(f's_lshr_b32 s30, s{sj}, 6'); e('s_lshl_b32 s31, s4, 2'); e('s_add_u32 s30, s30, s31')
        e(f's_and_b32 s31, s{sj}, 63')
        e('s_lshl_b32 s24, s30, 16'); e('s_lshl_b32 s25, s31, 10'); e('s_add_u32 s24, s24, s25')
        e(f's_add_u32 s27, s24, {QB_OFF}')
        e(f's_add_u32 s24, s24, {KB_OFF - 8192}')
        e('s_add_u32 s25, s24, 4096'); e('s_add_u32 s26, s24, 8192')
        e('s_lshr_b32 s28, s30, 1'); e('s_lshl_b32 s28, s28, 14'); e('s_and_b32 s29, s30, 1'); e('s_lshl_b32 s29, s29, 2')
        e('s_add_u32 s28, s28, s29'); e('s_lshl_b32 s29, s31, 8'); e('s_add_u32 s28, s28, s29')
        e(f's_add_u32 s29, s28, {QB_OFF + X2_REL}')
        e(f's_add_u32 s28, s28, {KB_OFF + X2_REL - 2048}')
    vm = []
    def ld(tag_, text): e(text); vm.append(tag_)
    def wait(tag_):
        last = max(i for i, t in enumerate(vm) if t == tag_)
        e(f's_waitcnt vmcnt({len(vm) - 1 - last})')
    def loadK(t): ld('K', f'buffer_load_dwordx4 {vr(kloc[t],4)}, v{vK1}, {ws}, s{24 + t // 4} offen offset:{(t % 4) * 1024}')
    def loadQ():
        ld('K', f'buffer_load_dwordx4 {vr(Q1,4)}, v{vK1}, {ws}, s27 offen')
        e(f'v_and_b32 v{t0}, 0xff, v{vK2}')
        ld('K', f'buffer_load_dword v{q2r}, v{t0}, {ws}, s29 offen')
        for i in range(5): ld('K', f'buffer_load_dword v{K2+i}, v{vK2}, {ws}, s28 offen offset:{i*512}')
        loadK(1)
    def loadV(t):
        e(f's_add_i32 s36, s33, {t - 8}'); e('s_max_i32 s36, s36, 0'); e(f's_mul_i32 s36, s36, {2*VT_LD}')
        e(f's_add_u32 s36, s36, {VT_OFF}'); e(f's_add_u32 s37, s36, {VT_LD}')
        ld(('V', t), f'buffer_load_dwordx4 {vr(vloc[t],4)}, v{vV}, {ws}, s36 offen')
        ld(('V', t), f'buffer_load_dwordx4 {vr(vloc[t]+4,4)}, v{vV}, {ws}, s37 offen')
    pts = [0]
    def bar(i):
        if coupled and i in nbar_pts: e('s_barrier')
    done = f'k1_{tag}_done'; loop = f'k1_{tag}_loop'
    e('s_cmp_ge_u32 s20, s22'); e(f's_cbranch_scc1 {done}')
    kaddr(20)
    loadQ()
    for t in (2, 3, 4, 5, 6, 7, 8, 0): loadK(t)
    e('s_mov_b32 s23, 1')
    e.label(loop); e.hist = []
    vm[:] = ['K'] + ['S'] * 10
    e('s_mov_b32 s32, s30'); e('s_mov_b32 s33, s31')
    e(f'v_mad_u32_u24 v{vV}, v{vVm}, s32, v{vVl}')
    for t in (0, 8, 1, 2, 3, 4, 5): loadV(t)
    e('s_add_u32 s20, s20, s21'); e('s_sub_u32 s34, s22, 1'); e('s_min_u32 s34, s34, s20')
    kaddr(34)
    l1 = e.newlabel('k1a')
    e('s_cmp_eq_u32 s23, 0'); e(f's_cbranch_scc1 {l1}')
    e('s_waitcnt vmcnt(14)'); e('s_mov_b32 s23, 0')
    e.label(l1)
    wait('K')
    e(f'v_cndmask_b32 v{Q2}, 0, v{q2r}, s[72:73]'); e(f'v_cndmask_b32 v{Q2+5}, 0, v{q2r}, s[72:73]')
    e(f'v_cndmask_b32 v{Q2+2}, v{q2r}, 0, s[72:73]'); e(f'v_cndmask_b32 v{Q2+7}, v{q2r}, 0, s[72:73]')
    order = [8, 0, 7, 6, 5, 4, 3, 2, 1]
    first = [True]
    def inval(t):
        if t == 8: return
        l = e.newlabel('k1v')
        e(f's_cmp_ge_u32 s33, {8 - t}'); e(f's_cbranch_scc1 {l}')
        h = list(e.hist)
        for r in range(16): e(f'v_mov_b32 v{Tt(t)+r}, s38')
        e.label(l); e.hist = h + [None]
    def mx(t):
        b = Tt(t)
        for r in range(0, 16, 2):
            if first[0]: e(f'v_max_f32 v{vm_}, v{b+r}, v{b+r+1}'); first[0] = False
            else: e(f'v_max3_f32 v{vm_}, v{b+r}, v{b+r+1}, v{vm_}')
    def post(t):
        if t == 8: return
        inval(t)
        if t == 0:
            for r in range(16):
                e(f'v_cndmask_b32 v{Tt(0)+r}, v{Tt(8)+r}, v{Tt(0)+r}, s[{MSK+2*r}:{MSK+2*r+1}]')
        mx(t)
    for n, t in enumerate(order):
        a = vr(Tt(t), 16)
        e(f'v_mfma_f32_32x32x16_bf16 {a}, {vr(kloc[t],4)}, {vr(Q1,4)}, 0')
        e(f'v_mfma_f32_32x32x8bf16_1k {a}, {vr(K2 + (t // 4) * 2, 2)}, {vr(Q2 + ((t >> 1) & 1) * 4 + (t & 1) * 2, 2)}, {a}')
        if n >= 2: post(order[n - 2])
        if n == 4: bar(0)
    loadQ()
    post(2)
    post(1)
    e(f'v_mov_b32 v{t0}, v{vm_}')
    e(f'v_permlane32_swap_b32 v{vm_}, v{t0}')
    e(f'v_max_f32 v{vm_}, v{vm_}, v{t0}')
    e(f'v_mul_f32 v{nm}, {hex(f2u(-c))}, v{vm_}')
    bar(1)
    O = vr(Tt(8), 16)
    pend = []
    def pv(t, p, firstc=False):
        wait(('V', t))
        e(f'v_mfma_f32_32x32x16_bf16 {O}, {vr(vloc[t],4)}, {vr(p,4)}, {"0" if firstc else O}')
        e(f'v_mfma_f32_32x32x16_bf16 {O}, {vr(vloc[t]+4,4)}, {vr(p+4,4)}, {O}')
    for t in range(8):
        b = Tt(t)
        for r in range(0, 16, 2):
            e(f'v_pk_fma_f32 {vr(b+r,2)}, {vr(b+r,2)}, {vr(cc,2)}, {vr(nm,2)} op_sel_hi:[1,0,0]')
        for r in range(16):
            e(f'v_exp_f32 v{b+r}, v{b+r}')
            if r == 3 and pend:
                for f in pend: f()
                pend = []
        for i in range(8): e(f'v_cvt_pk_bf16_f32 v{b+i}, v{b+2*i}, v{b+2*i+1}')
        if t == 0:
            for i in range(8):
                e(f'v_and_b32 v{b+8+i}, v{PM+i}, v{b+i}')
                e(f'v_xor_b32 v{b+i}, v{b+i}, v{b+8+i}')
            def f0():
                pv(0, Tt(0) + 8, True); pv(8, Tt(0)); loadV(6); loadV(7)
            pend.append(f0)
        else:
            if t <= 4:
                for kt in {1: (2, 3), 2: (4, 5), 3: (6, 7), 4: (8, 0)}[t]: loadK(kt)
            pend.append(lambda t=t: pv(t, Tt(t)))
        bar(2 + t)
    for f in pend: f()
    e(f's_mul_i32 s36, s32, {18*4096}'); e('s_lshl_b32 s37, s33, 6'); e('s_add_u32 s36, s36, s37'); e(f's_add_u32 s36, s36, {OT_OFF}')
    o = Tt(8)
    e(f'v_rcp_f32 v{nm}, v{o+10}')
    for r in range(0, 10, 2):
        e(f'v_pk_mul_f32 {vr(o+r,2)}, {vr(o+r,2)}, {vr(nm,2)} op_sel_hi:[1,0]')
    for r in range(0, 10, 2):
        e(f'v_cvt_pk_bf16_f32 v{o+r}, v{o+r}, v{o+r+1}')
    for r in range(10):
        e(f's_add_u32 s37, s36, {(8*(r>>2)+(r&3))*4096}')
        op = 'buffer_store_short_d16_hi' if r & 1 else 'buffer_store_short'
        ld('S', f'{op} v{o+(r&~1)}, v{vO2 if r >= 8 else vO}, {ws}, s37 offen')
    assert vm[-10:] == ['S'] * 10 and vm[-11] == 'K', vm
    bar(10)
    e('s_cmp_lt_u32 s20, s22'); e(f's_cbranch_scc1 {loop}')
    e.label(done)
    e('s_endpgm')

def gen_k1(e, opts):
    name = 'k1_gemm1_attn_kernel'
    D = opts.get('k1d', 5); NA = opts.get('na', 3)
    header(e, name)
    e('s_cmp_ge_u32 s2, 256'); e('s_cbranch_scc1 k1_exit')
    e('s_load_dwordx4 s[24:27], s[0:1], 32')
    e('s_load_dwordx2 s[30:31], s[0:1], 80')
    e('v_lshrrev_b32 v1, 6, v0')
    e('v_and_b32 v0, 63, v0')
    e('v_readfirstlane_b32 s3, v1')
    e('s_and_b32 s4, s2, 7'); e('s_lshr_b32 s5, s2, 3')
    e('s_waitcnt lgkmcnt(0)')
    srd(e, SW1, 24, W1_BYTES); srd(e, SB1, 26, 4608 * 2); srd(e, SWS, 30, WS_USED)
    e('s_cmp_ge_u32 s5, 27'); e('s_cbranch_scc1 k1_free')
    e('s_cmp_ge_u32 s3, 6'); e('s_cbranch_scc1 k1_cattn')
    e('s_mul_i32 s6, s4, 27'); e('s_add_u32 s6, s6, s5')
    e('s_mul_i32 s7, s6, 171'); e('s_lshr_b32 s7, s7, 10')
    e('s_mul_i32 s20, s7, 6'); e('s_sub_u32 s6, s6, s20')
    e('s_cmp_ge_u32 s3, 4'); e('s_cbranch_scc1 k1_loader')
    e('s_setprio 2')
    A = Alloc('v', 1, 256)
    NS = (D + 1) // 2
    va = A.get(NS); vb = A.get(4 * NS); vt = A.get(6); vg = A.get()
    cs = A.get(8, 2)
    acc = A.get(48, 4); fr = A.get(64, 4)
    e('s_lshl_b32 s20, s7, 8'); e('s_lshl_b32 s21, s3, 6'); e('s_add_u32 s20, s20, s21')
    e(f'v_lshrrev_b32 v{vt}, 5, v0')
    e(f'v_lshlrev_b32 v{vt+1}, 3, v{vt}')
    for q in range(4): e(f'buffer_load_dwordx2 {vr(fr+2*q,2)}, v{vt+1}, s[{SB1}:{SB1+3}], s20 offen offset:{q*16}')
    e(f'v_bfe_u32 v{vt+2}, v0, 2, 2')
    e(f'v_add_u32 v{vt+3}, v{vt+1}, v{vt+2}'); e(f'v_lshlrev_b32 v{va}, 8, v{vt+3}')
    e(f'v_xor_b32 v{vt+3}, s3, v{vt+2}'); e(f'v_lshl_add_u32 v{va}, v{vt+3}, 6, v{va}')
    e(f'v_bfe_u32 v{vt+3}, v0, 4, 1'); e(f'v_lshl_add_u32 v{va}, v{vt+3}, 5, v{va}')
    e(f'v_and_b32 v{vt+3}, 3, v0'); e(f'v_lshl_add_u32 v{va}, v{vt+3}, 3, v{va}')
    e(f'v_and_b32 v{vt+4}, 31, v0'); e(f'v_bfe_u32 v{vt+3}, v0, 1, 3'); e(f'v_xor_b32 v{vt+3}, v{vt+3}, v{vt}')
    for ks in range(4):
        e(f'v_xor_b32 v{vt+5}, {2*ks}, v{vt+3}'); e(f'v_lshlrev_b32 v{vt+5}, 4, v{vt+5}')
        e(f'v_lshl_add_u32 v{vb+ks}, v{vt+4}, 7, v{vt+5}')
    for s in range(1, NS):
        e(f'v_add_u32 v{va+s}, {2*s*K1_SLOT}, v{va}')
        for ks in range(4): e(f'v_add_u32 v{vb+4*s+ks}, {2*s*K1_SLOT}, v{vb+ks}')
    e('s_mul_i32 s21, s6, 96'); e(f'v_add_u32 v{vt+4}, s21, v{vt+4}'); e(f'v_mul_u32_u24 v{vg}, {GE_LD}, v{vt+4}')
    e(f'v_lshl_add_u32 v{vg}, v{vt}, 4, v{vg}')
    e(f's_add_u32 s22, s20, {GE_OFF}')
    e('s_waitcnt vmcnt(0)')
    for q in range(4):
        for i in range(2):
            e(f'v_lshlrev_b32 v{acc+4*q+2*i}, 16, v{fr+2*q+i}'); e(f'v_and_b32 v{acc+4*q+2*i+1}, 0xffff0000, v{fr+2*q+i}')
    for r in range(16):
        e(f'v_mov_b32 v{acc+16+r}, v{acc+r}'); e(f'v_mov_b32 v{acc+32+r}, v{acc+r}')
    def reads(slot, ks):
        s, o = slot // 2, (slot % 2) * K1_SLOT
        d = fr + ks * 16
        L = [f'ds_read_b64_tr_b16 {vr(d,2)}, v{va+s} offset:{o + ks*4096}',
             f'ds_read_b64_tr_b16 {vr(d+2,2)}, v{va+s} offset:{o + ks*4096 + 1024}']
        for dt in range(3): L.append(f'ds_read_b128 {vr(d+4+4*dt,4)}, v{vb+4*s+ks} offset:{o + 16384 + dt*4096}')
        return L
    def stage(slot, last=False):
        for ks in range(4):
            nslot, nks = (slot, ks + 2) if ks < 2 else ((slot + 1) % D, ks - 2)
            R = reads(nslot, nks) if not (last and ks >= 2) else []
            if ks == 2: e('s_waitcnt lgkmcnt(0)')
            elif ks != 3: e('s_waitcnt lgkmcnt(5)')
            d = fr + ks * 16
            for dt in range(3):
                a = vr(acc + 16 * dt, 16)
                e(f'v_mfma_f32_32x32x16_bf16 {a}, {vr(d,4)}, {vr(d+4+4*dt,4)}, {a}')
                if dt == 0 and ks == 2 and not last: e('s_barrier')
                for x in R[2*dt:2*dt+2]: e(x)
    e('s_barrier')
    for ks in range(2):
        for x in reads(0, ks): e(x)
    nit = 32 // D if 32 % D else 32 // D - 1
    e(f's_mov_b32 s23, {nit}')
    e.label('k1_cloop'); e.hist = []
    for s in range(D): stage(s)
    e('s_sub_u32 s23, s23, 1'); e('s_cmp_lg_u32 s23, 0'); e('s_cbranch_scc1 k1_cloop')
    rem = 32 - nit * D
    for s in range(rem): stage(s, last=(s == rem - 1))
    c0 = -2 * 0.7978845608028654 * LOG2E; c1 = c0 * 0.044715
    e(f'v_mov_b32 v{cs}, {hex(f2u(c0))}'); e(f'v_mov_b32 v{cs+2}, {hex(f2u(c1))}'); e(f'v_mov_b32 v{cs+4}, 1.0')
    e(f's_add_u32 s24, s22, {32*GE_LD}'); e(f's_add_u32 s25, s22, {64*GE_LD}')
    for dt in range(3):
        a = acc + 16 * dt; t = fr + 16 * dt
        for r in range(0, 16, 2): e(f'v_pk_mul_f32 {vr(t+r,2)}, {vr(a+r,2)}, {vr(a+r,2)}')
        for r in range(0, 16, 2): e(f'v_pk_fma_f32 {vr(t+r,2)}, {vr(t+r,2)}, {vr(cs+2,2)}, {vr(cs,2)} op_sel_hi:[1,0,0]')
        for r in range(0, 16, 2): e(f'v_pk_mul_f32 {vr(t+r,2)}, {vr(t+r,2)}, {vr(a+r,2)}')
        for r in range(16): e(f'v_exp_f32 v{t+r}, v{t+r}')
        for r in range(0, 16, 2): e(f'v_pk_add_f32 {vr(t+r,2)}, {vr(t+r,2)}, {vr(cs+4,2)} op_sel_hi:[1,0]')
        for r in range(16): e(f'v_rcp_f32 v{t+r}, v{t+r}')
        for r in range(0, 16, 2): e(f'v_pk_mul_f32 {vr(a+r,2)}, {vr(a+r,2)}, {vr(t+r,2)}')
        for i in range(8): e(f'v_cvt_pk_bf16_f32 v{a+i}, v{a+2*i}, v{a+2*i+1}')
        for hf in range(2):
            p = a + 4 * hf
            e(f'v_permlane32_swap_b32 v{p}, v{p+2}'); e(f'v_permlane32_swap_b32 v{p+1}, v{p+3}')
            e(f'buffer_store_dwordx4 {vr(p,4)}, v{vg}, s[{SWS}:{SWS+3}], s{(22,24,25)[dt]} offen offset:{hf*32}')
    e('s_endpgm')

    e.label('k1_loader'); e.hist = []
    e('s_setprio 3')
    vo = 8
    e('v_lshrrev_b32 v1, 4, v0'); e('v_bfe_u32 v2, v0, 2, 2'); e('v_xor_b32 v2, v2, v1'); e('v_lshlrev_b32 v2, 6, v2')
    e('v_and_b32 v3, 3, v0'); e('v_lshl_add_u32 v2, v3, 4, v2'); e('v_mad_u32_u24 v2, v1, 9216, v2') if False else None
    e('v_mul_u32_u24 v3, 9216, v1'); e('v_add_u32 v2, v2, v3')
    e('v_lshrrev_b32 v3, 3, v0'); e(f'v_mul_u32_u24 v3, {HT_LD}, v3'); e('v_and_b32 v4, 7, v0'); e('v_xor_b32 v4, v4, v1')
    e('v_lshl_add_u32 v5, v4, 4, v3')
    e('v_xor_b32 v4, 4, v4'); e('v_lshl_add_u32 v6, v4, 4, v3')
    e('s_lshl_b32 s24, s7, 8')
    e(f's_mul_i32 s25, s6, {96*HT_LD}')
    assert HT_OFF == 0
    e('s_cmp_eq_u32 s3, 5'); e('s_cbranch_scc1 k1_ld1')
    h0 = list(e.hist)
    for lw in range(2):
        if lw == 1: e.label('k1_ld1'); e.hist = list(h0)
        ins = [('w', i) for i in range(14)] if lw == 0 else [('w', 14), ('w', 15)] + [('h', i) for i in range(12)]
        pos = [i if k == 'w' else 16 + i for k, i in ins]
        grp = {}
        for n, (k, i) in enumerate(ins):
            io = (pos[n] - pos[0]) % 4
            if k == 'w': e(f'v_add_u32 v{vo+n}, {4*i*9216 - io*1024}, v2')
            else: e(f'v_add_u32 v{vo+n}, {8*i*HT_LD - io*1024 if 8*i*HT_LD >= io*1024 else 0}, v{5 + (i & 1)}')
        def issue(slotreg):
            n0 = None
            for n, (k, i) in enumerate(ins):
                io = (pos[n] - pos[0]) % 4
                if k == 'h' and 8 * i * HT_LD < io * 1024:
                    e(f's_add_u32 m0, s{slotreg}, {pos[n]*1024}')
                    e(f'buffer_load_dwordx4 v{vo+n}, s[{SWS}:{SWS+3}], s25 offen lds')
                    e(f's_add_u32 m0, s{slotreg}, {(pos[n]-io)*1024}')
                    continue
                if io == 0: e(f's_add_u32 m0, s{slotreg}, {pos[n]*1024}')
                if k == 'w': e(f'buffer_load_dwordx4 v{vo+n}, s[{SW1}:{SW1+3}], s24 offen offset:{io*1024} lds')
                else: e(f'buffer_load_dwordx4 v{vo+n}, s[{SWS}:{SWS+3}], s25 offen offset:{io*1024} lds')
            e(f's_add_u32 s24, s24, {64*9216}'); e('s_add_u32 s25, s25, 128')
            e(f's_add_u32 s{slotreg}, s{slotreg}, {K1_SLOT}'); e(f's_cmp_ge_u32 s{slotreg}, {D*K1_SLOT}')
            e(f's_cselect_b32 s{slotreg}, 0, s{slotreg}')
        e('s_mov_b32 s26, 0')
        e(f's_mov_b32 s27, {D}')
        lp = f'k1_lp{lw}'
        e.label(lp); e.hist = []
        issue(26)
        e('s_sub_u32 s27, s27, 1'); e('s_cmp_lg_u32 s27, 0'); e(f's_cbranch_scc1 {lp}')
        e(f's_waitcnt vmcnt({14*(D-1)})'); e('s_barrier')
        e(f's_mov_b32 s27, {32 - D}')
        lq = f'k1_lq{lw}'
        e.label(lq); e.hist = []
        e(f's_waitcnt vmcnt({14*(D-2)})'); e('s_barrier')
        issue(26)
        e('s_sub_u32 s27, s27, 1'); e('s_cmp_lg_u32 s27, 0'); e(f's_cbranch_scc1 {lq}')
        for j in range(33 - D, 32):
            e(f's_waitcnt vmcnt({14*(31-j)})'); e('s_barrier')
        e('s_endpgm')

    e.label('k1_cattn'); e.hist = []
    e(f's_mul_i32 s20, s5, {2*NA}'); e(f's_add_u32 s22, s20, {2*NA}'); e('s_add_u32 s20, s20, s3'); e('s_sub_u32 s20, s20, 6')
    e('s_mov_b32 s21, 2')
    pts = {3: (0, 1, 2, 3, 4, 5, 6, 7, 8, 9), 2: tuple(range(11)), 1: tuple(range(11)), 4: (1, 2, 3, 5, 6, 8, 9, 10), 0: ()}[NA]
    attn(e, 'c', True, pts)
    e.label('k1_free'); e.hist = []
    e('s_sub_u32 s20, s5, 27'); e('s_lshl_b32 s20, s20, 3'); e('s_add_u32 s20, s20, s3'); e(f's_add_u32 s20, s20, {54*NA}')
    e('s_mov_b32 s21, 40'); e('s_mov_b32 s22, 256')
    attn(e, 'f', False, ())
    e.label('k1_exit')
    e('s_endpgm')
    return name, 256, D * K1_SLOT
```

```python
import sys, os
sys.path.insert(0, os.path.dirname(__file__))
from asmlib import Emit
import gen
def build(out, which=('k0','k1','k2'), opts=None):
    ref = open('cdna_kernels/%s.s.ref' % gen.NAME).read().split('\n')
    top = [l for l in ref if l.startswith(';') and ('offset' in l or 'Kernarg' in l)]
    e = Emit()
    gen.OPT.update(opts or {})
    gen.DBG[0] = (opts or {}).get('dbg', 0)
    ks = []
    import importlib
    for k in which:
        if k == 'k0': ks.append(gen.gen_k0(e))
        elif k == 'k1':
            import k1; ks.append(k1.gen_k1(e, opts or {}))
        elif k == 'k2':
            import k2; ks.append(k2.gen_k2(e, opts or {}))
    s = '\n'.join(top) + '\n'
    for (name, nv, lds) in ks:
        s += f'; @launch kernel={name} grid=(256,1,1) block=(512,1,1) lds={lds}\n'
    s += '.amdgcn_target "amdgcn-amd-amdhsa--gfx950"\n.text\n' + e.text() + '.section .rodata,"a"\n'
    for (name, nv, lds) in ks: s += gen.descriptor(name, nv)
    open(out, 'w').write(s)
if __name__ == '__main__':
    out = sys.argv[1] if len(sys.argv) > 1 else 'cdna_kernels/%s.s' % gen.NAME
    which = sys.argv[2].split(',') if len(sys.argv) > 2 else ('k0','k1','k2')
    opts = dict(kv.split('=') for kv in sys.argv[3].split(',')) if len(sys.argv) > 3 else {}
    opts = {k: int(v) for k, v in opts.items()}
    build(out, which, opts)
```

```python
import sys, math
from asmlib import Emit, Alloc, vr, sr, f2u

NAME = 'parallel_sum__sliding_block__mixer_token_mlp__prompt'
HT_OFF, HT_LD = 0x1000, 4224
GE_OFF, GE_LD = 0x260000, 10368
OT_OFF = 0x820000
QB_OFF = 0xA60000
KB_OFF = 0xCA0000
X2_REL = 0x200000
VT_OFF, VT_LD = 0xEE0000, 577 * 32
PART_OFF = 0x1130000
FLAG_OFF = 0x2330000
DBG_OFF = 0x2340000
WS_USED = 0x2340000 + 3 * 0x20000
DBG = [0]
X_BYTES = 2048 * 576 * 2
WQKV_BYTES = 576 * 1728 * 2
WO_BYTES = 576 * 576 * 2
W1_BYTES = 2048 * 4608 * 2
ONES = 0x3F803F80

def srd(e, d, lo, nbytes):
    e(f's_mov_b32 s{d}, s{lo}')
    e(f's_and_b32 s{d+1}, s{lo+1}, 0xffff')
    e(f's_mov_b32 s{d+2}, {nbytes}')
    e(f's_mov_b32 s{d+3}, 0x20000')

def header(e, name):
    e('.p2align 8'); e(f'.globl {name}'); e(f'.type {name},@function'); e(f'{name}:')
    e.hist = []

def stamp(e, i):
    if DBG[0]: e(f's_memtime s[{80+2*i}:{81+2*i}]')
def dstart(e):
    if DBG[0]:
        e('s_memrealtime s[92:93]')
        for i in range(6): stamp(e, i)
def endp(e, kidx, sws):
    if DBG[0]:
        stamp(e, 5)
        e('s_memrealtime s[94:95]')
        e('s_waitcnt lgkmcnt(0)')
        for i, s in enumerate((92, 94, 80, 82, 84, 86, 88, 90)): e(f'v_mov_b32 v{4+i}, s{s}')
        e('s_lshl_b32 s80, s2, 3'); e('s_add_u32 s80, s80, s3'); e('s_lshl_b32 s80, s80, 6'); e(f's_add_u32 s80, s80, {DBG_OFF + kidx*0x20000}')
        e('v_mov_b32 v2, 0')
        e(f'buffer_store_dwordx4 v[4:7], v2, s[{sws}:{sws+3}], s80 offen')
        e(f'buffer_store_dwordx4 v[8:11], v2, s[{sws}:{sws+3}], s80 offen offset:16')
    e('s_endpgm')

OPT = {}
def pf_w1_setup(e, vtmp, sa, sb, sw):
    e(f's_mul_i32 s{sa}, s4, 9'); e(f's_lshr_b32 s{sa}, s{sa}, 1'); e(f's_lshl_b32 s{sa}, s{sa}, 8')
    e(f's_mul_i32 s{sb}, s5, {64*9216}'); e(f's_add_u32 s{sa}, s{sa}, s{sb}')
    e(f's_lshl_b32 s{sb}, s{sw}, 7'); e(f's_add_u32 s{sa}, s{sa}, s{sb}')
    e(f'v_mul_u32_u24 v{vtmp}, 9216, v0')
def pf_w1(e, SP, vtmp, vdst, sa, line):
    if not OPT.get('pf', 1): return 0
    e(f'buffer_load_dword v{vdst}, v{vtmp}, s[{SP}:{SP+3}], s{sa} offen offset:{line*128}')
    return 1

def descriptor(name, nv, ns=102):
    acc = (nv + 3) // 4 * 4
    return f'''.p2align 6
.amdhsa_kernel {name}
  .amdhsa_next_free_vgpr {nv}
  .amdhsa_next_free_sgpr {ns}
  .amdhsa_accum_offset {acc}
  .amdhsa_group_segment_fixed_size 0
  .amdhsa_kernarg_size 88
  .amdhsa_user_sgpr_count 2
  .amdhsa_user_sgpr_kernarg_segment_ptr 1
  .amdhsa_system_sgpr_workgroup_id_x 1
.end_amdhsa_kernel
'''

def rbf(e, v):
    e(f'v_cvt_pk_bf16_f32 v{v}, v{v}, v{v}')
    e(f'v_lshlrev_b32 v{v}, 16, v{v}')

def ln_scalars(e, mean, var, tmp):
    rbf(e, mean)
    rbf(e, var)
    e(f'v_add_f32 v{var}, {hex(f2u(1e-5))}, v{var}')
    rbf(e, var)
    e(f'v_sqrt_f32 v{var}, v{var}')
    rbf(e, var)
    e(f'v_rcp_f32 v{var}, v{var}')

K0_SLOT = 40960
K0_D = 3
K0_CS = 0
K0_ST = K0_CS + 1024
K0_LDS = K0_D * K0_SLOT
def q_first(e, sd, sx, st):
    e(f's_lshr_b32 s{st}, s{sx}, 1'); e(f's_mul_i32 s{sd}, s{st}, 20'); e(f's_cmp_lg_u32 s{st}, 0'); e(f's_addc_u32 s{sd}, s{sd}, 0')
    e(f's_lshl_b32 s{sd}, s{sd}, 18'); e(f's_and_b32 s{st}, s{sx}, 1'); e(f's_lshl_b32 s{st}, s{st}, 11'); e(f's_add_u32 s{sd}, s{sd}, s{st}')
def w1_lane(e, v, t):
    e(f'v_mul_u32_u24 v{v}, 26, v0'); e(f'v_lshrrev_b32 v{v}, 8, v{v}'); e(f'v_mul_u32_u24 v{t}, 10, v{v}'); e(f'v_sub_u32 v{t}, v0, v{t}')
    e(f'v_mul_u32_u24 v{v}, 9216, v{v}'); e(f'v_lshl_add_u32 v{v}, v{t}, 7, v{v}')
    e(f'v_mov_b32 v{t}, 0x40000000'); e('v_cmp_gt_u32 vcc, 60, v0'); e(f'v_cndmask_b32 v{v}, v{t}, v{v}, vcc')

def gen_k0(e):
    name = 'k0_ln_qkv_kernel'
    header(e, name)
    SX, SW, SWS, SWO = 8, 12, 16, 20
    D = K0_D
    e('s_cmp_ge_u32 s2, 256'); e('s_cbranch_scc1 k0_exit')
    dstart(e)
    e('s_load_dwordx4 s[24:27], s[0:1], 0')
    e('s_load_dwordx2 s[28:29], s[0:1], 16')
    e('s_load_dwordx2 s[30:31], s[0:1], 80')
    e('s_load_dwordx2 s[44:45], s[0:1], 32')
    e('v_lshrrev_b32 v1, 6, v0')
    e('v_and_b32 v0, 63, v0')
    e('v_readfirstlane_b32 s3, v1')
    e('s_and_b32 s4, s2, 7')
    e('s_lshr_b32 s5, s2, 3')
    e('s_lshl_b32 s6, s4, 1'); e('s_and_b32 s7, s5, 1'); e('s_add_u32 s6, s6, s7')
    e('s_lshr_b32 s7, s5, 1')
    e('s_waitcnt lgkmcnt(0)')
    srd(e, SX, 24, X_BYTES); srd(e, SW, 26, WQKV_BYTES); srd(e, SWO, 28, WO_BYTES); srd(e, SWS, 30, WS_USED); srd(e, 48, 44, W1_BYTES)
    e('s_cmp_ge_u32 s5, 26'); e('s_cbranch_scc1 k0_pf')
    e('s_cmp_ge_u32 s5, 18'); e('s_cbranch_scc1 k0_ln')
    e('s_cmp_ge_u32 s3, 4'); e('s_cbranch_scc1 k0_loader')

    def wbase(d0, t):
        e(f'v_lshrrev_b32 v{t}, 4, v0'); e(f'v_bfe_u32 v{t+1}, v0, 2, 2'); e(f'v_lshl_add_u32 v{t+2}, v{t}, 3, v{t+1}')
        e(f'v_mul_u32_u24 v{t+2}, 384, v{t+2}'); e(f'v_and_b32 v{t+3}, 3, v0'); e(f'v_lshl_add_u32 v{t+2}, v{t+3}, 3, v{t+2}')
        e(f'v_lshrrev_b32 v{t+1}, 1, v{t+1}'); e(f'v_and_b32 v{t}, 1, v{t}'); e(f'v_lshl_add_u32 v{t+1}, v{t}, 1, v{t+1}')
    e('s_setprio 2')
    A = Alloc('v', 1, 256)
    vw0 = A.get(4); vw = A.get(4); vx0 = A.get(2); vx = A.get(2)
    vt = A.get(6)
    st = A.get(4, 2); sa = A.get(16, 4); on = A.get(4, 4)
    vad = A.get(24)
    acc = A.get(96, 4); cs = A.get(56, 4); wr = cs + 16; xr = cs + 40
    wbase(vw0, cs)
    for n in range(4):
        e(f'v_xor_b32 v{cs}, {n}, v{cs+1}'); e(f'v_lshl_add_u32 v{vw0+n}, v{cs}, 5, v{cs+2}')
    e('s_lshl_b32 s32, s6, 7'); e('s_lshl_b32 s33, s3, 5'); e('s_add_u32 s32, s32, s33')
    e(f'v_and_b32 v{vt}, 15, v0')
    e(f'v_lshrrev_b32 v{vt+1}, 4, v0')
    e(f'v_add_u32 v{vt+2}, s32, v{vt}')
    e(f'v_lshrrev_b32 v{vt+3}, 1, v{vt}'); e(f'v_xor_b32 v{vt+3}, v{vt+3}, v{vt+1}')
    e(f'v_add_u32 v{vt+4}, s33, v{vt}'); e(f'v_lshlrev_b32 v{vt+4}, 7, v{vt+4}')
    e(f'v_lshl_add_u32 v{vx0}, v{vt+3}, 4, v{vt+4}')
    e(f'v_xor_b32 v{vt+3}, 4, v{vt+3}'); e(f'v_lshl_add_u32 v{vx0+1}, v{vt+3}, 4, v{vt+4}')
    for i in range(4): e(f'v_mov_b32 v{vw+i}, v{vw0+i}'); e(f'v_mov_b32 v{on+i}, {hex(ONES)}')
    for i in range(2): e(f'v_mov_b32 v{vx+i}, v{vx0+i}')
    for i in range(16): e(f'v_mov_b32 v{sa+i}, 0')
    e('s_mul_i32 s35, s7, 86'); e('s_lshr_b32 s35, s35, 8'); e('s_mul_i32 s34, s35, 3'); e('s_sub_u32 s35, s7, s34')
    e('s_mov_b32 s44, 0')
    e('s_cmp_ge_u32 s7, 6'); e('s_cbranch_scc1 k0_cv')
    hist0 = list(e.hist)

    for variant in ('qk', 'v'):
        if variant == 'v':
            e.label('k0_cv'); e.hist = list(hist0)
            e('s_lshr_b32 s36, s32, 5'); e(f's_mul_i32 s36, s36, {2*VT_LD}'); e(f's_add_u32 s36, s36, {VT_OFF}')
            e(f's_mul_i32 s37, s35, {192*32}'); e('s_add_u32 s36, s36, s37')
            e(f'v_lshlrev_b32 v{vad}, 5, v{vt}')
            e(f'v_and_b32 v{vt+4}, 1, v{vt+1}')
            e(f'v_lshl_add_u32 v{vad}, v{vt+4}, 4, v{vad}')
            e(f'v_lshrrev_b32 v{vt+4}, 1, v{vt+1}')
            e(f'v_lshl_add_u32 v{vad}, v{vt+4}, 3, v{vad}')
            e(f'v_add_u32 v{vad}, s36, v{vad}')
        else:
            e(f's_mov_b32 s36, {QB_OFF}'); e(f's_mov_b32 s37, {KB_OFF}')
            e('s_cmp_ge_u32 s7, 3'); e('s_cselect_b32 s36, s37, s36')
            e('s_mul_i32 s37, s35, 48')
            e(f'v_lshlrev_b32 v{vt+3}, 5, v{vt+2}')
            e(f'v_lshlrev_b32 v{vt+4}, 3, v{vt+2}')
            e(f'v_add_u32 v{vt+5}, s37, v{vt+1}')
            t0, t1, t2 = cs, cs + 1, cs + 2
            for nt in range(12):
                e(f'v_add_u32 v{t0}, {4*nt}, v{vt+5}')
                e(f'v_mul_u32_u24 v{t1}, 57, v{t0}')
                e(f'v_lshrrev_b32 v{t1}, 9, v{t1}')
                e(f'v_mul_u32_u24 v{t2}, 9, v{t1}')
                e(f'v_sub_u32 v{t0}, v{t0}, v{t2}')
                e(f'v_cmp_lt_u32 vcc, 4, v{t0}')
                e(f'v_lshlrev_b32 v{t2}, 17, v{t1}')
                e(f'v_lshl_add_u32 v{t2}, v{t0}, 3, v{t2}')
                e(f'v_add_u32 v{t2}, v{t2}, v{vt+3}')
                e(f'v_add_u32 v{vad+nt}, {65536-40}, v{t2}')
                e(f'v_cndmask_b32 v{t2}, v{t2}, v{vad+nt}, vcc')
                e(f'v_cmp_eq_u32 vcc, 4, v{t0}')
                e(f'v_lshlrev_b32 v{t1}, 14, v{t1}')
                e(f'v_add_u32 v{t1}, {X2_REL}, v{t1}')
                e(f'v_add_u32 v{t1}, v{t1}, v{vt+4}')
                e(f'v_cndmask_b32 v{vad+nt}, v{t2}, v{t1}, vcc')
                e(f'v_mov_b32 v{t0}, 512')
                e(f'v_mov_b32 v{t1}, 128')
                e(f'v_cndmask_b32 v{t0}, v{t0}, v{t1}, vcc')
                e(f'v_add_u32 v{vad+12+nt}, v{vad+nt}, v{t0}')
        for i in range(96): e(f'v_mov_b32 v{acc+i}, 0')
        lg = []
        def rd(u):
            kk, nt = divmod(u, 12)
            if nt == 0:
                for rt in range(2):
                    e(f'ds_read_b128 {vr(xr + kk*8 + rt*4, 4)}, v{vx+kk} offset:{24576 + rt*2048}'); lg.append('x')
            d = wr + (u % 6) * 4
            for j in range(2):
                e(f'ds_read_b64_tr_b16 {vr(d+2*j,2)}, v{vw+(nt&3)} offset:{kk*12288 + j*1536 + (nt>>2)*128}'); lg.append(u)
        def waitfor(u):
            idx = [i for i, t in enumerate(lg) if t == u]
            if not idx: return
            e(f's_waitcnt lgkmcnt({len(lg) - 1 - idx[-1]})'); del lg[:idx[-1] + 1]
        def stage(last):
            for u in range(24):
                kk, nt = divmod(u, 12)
                if u == 20: e('s_waitcnt lgkmcnt(0)'); lg.clear()
                else: waitfor(u)
                w = vr(wr + (u % 6) * 4, 4)
                for rt in range(2):
                    a = vr(acc + (nt * 2 + rt) * 4, 4); x = vr(xr + kk * 8 + rt * 4, 4)
                    if variant == 'qk': e(f'v_mfma_f32_16x16x32_bf16 {a}, {w}, {x}, {a}')
                    else: e(f'v_mfma_f32_16x16x32_bf16 {a}, {x}, {w}, {a}')
                    if rt == 0:
                        if u == 20 and not last:
                            e(f's_add_u32 s44, s44, {K0_SLOT}'); e(f's_cmp_ge_u32 s44, {D*K0_SLOT}'); e('s_cselect_b32 s44, 0, s44')
                            e('s_barrier')
                            for i in range(4): e(f'v_add_u32 v{vw+i}, s44, v{vw0+i}')
                            for i in range(2): e(f'v_add_u32 v{vx+i}, s44, v{vx0+i}')
                        if u <= 18: rd(u + 4)
                        elif u >= 20 and not last: rd(u - 20)
                    elif u == 18: rd(23)
                if 2 <= nt < 6:
                    k = nt - 2
                    a = vr(sa + k * 4, 4); x = vr(xr + kk * 8 + (k & 1) * 4, 4)
                    e(f'v_mfma_f32_16x16x32_bf16 {a}, {vr(on,4) if k < 2 else x}, {x}, {a}')
        if OPT.get('pfw', 0):
            l = e.newlabel('k0pw')
            e('s_cmp_eq_u32 s3, 3'); e(f's_cbranch_scc1 {l}')
            e('s_mul_i32 s46, s5, 3'); e('s_add_u32 s46, s46, s3');
            e('s_lshl_b32 s46, s46, 13'); e(f's_add_u32 s46, s46, {OPT.get("k0i", 2)*64*3456}')
            e('v_lshlrev_b32 v250, 7, v0')
            for r in range(3 if OPT.get('k0i', 2) == 3 else 4):
                e(f'buffer_load_dword v251, v250, s[{SW}:{SW+3}], s46 offen'); e(f's_add_u32 s46, s46, {128*3456}')
            e.label(l)
        stamp(e, 1)
        e('s_barrier')
        stamp(e, 2)
        for u in range(4): rd(u)
        lg0 = list(lg)
        e('s_mov_b32 s45, 8')
        lp = f'k0_loop_{variant}'
        e.label(lp); e.hist = []
        stage(False)
        assert lg == lg0
        e('s_sub_u32 s45, s45, 1'); e('s_cmp_lg_u32 s45, 0'); e(f's_cbranch_scc1 {lp}')
        stage(True)
        stamp(e, 3)
        e(f'v_and_b32 v{vt+3}, 3, v0')
        e(f'v_lshrrev_b32 v{vt+4}, 2, v{vt}'); e(f'v_lshl_add_u32 v{vt+4}, v{vt+4}, 4, v{vt}'); e(f'v_lshlrev_b32 v{vt+4}, 2, v{vt+4}')
        for r in range(1, 4): e(f'v_cmp_eq_u32 s[{50+2*r}:{51+2*r}], {r}, v{vt+3}')
        for rt in range(2):
            q = sa + 8 + rt * 4
            for r in range(1, 4): e(f'v_cndmask_b32 v{q}, v{q}, v{q+r}, s[{50+2*r}:{51+2*r}]')
            e(f'ds_bpermute_b32 v{st+2+rt}, v{vt+4}, v{q}')
            e(f'v_mov_b32 v{st+rt}, v{sa+rt*4}')
        e('s_waitcnt lgkmcnt(0)')
        inv = hex(f2u(1.0 / 576))
        for rt in range(2):
            e(f'v_mul_f32 v{st+rt}, {inv}, v{st+rt}')
            e(f'v_mul_f32 v{st+2+rt}, {inv}, v{st+2+rt}')
            e(f'v_fma_f32 v{st+2+rt}, -v{st+rt}, v{st+rt}, v{st+2+rt}')
            e(f'v_max_f32 v{st+2+rt}, 0, v{st+2+rt}')
            ln_scalars(e, st + rt, st + 2 + rt, vt + 3)
        e('s_barrier')
        stamp(e, 4)
        if variant == 'qk':
            e(f'v_lshlrev_b32 v{vt+3}, 4, v{vt+1}')
            e(f'v_add_u32 v{vt+3}, {K0_CS}, v{vt+3}')
            for nt in range(12):
                e(f'ds_read_b128 {vr(cs+nt*4,4)}, v{vt+3} offset:{nt*64}')
            mm = cs + 48
            for rt in range(2):
                e(f'v_sub_f32 v{mm+rt*4}, 0, v{st+rt}')
                e(f'v_mov_b32 v{mm+rt*4+2}, v{st+2+rt}')
            for nt in range(12):
                e(f's_waitcnt lgkmcnt({11-nt})')
                for rt in range(2):
                    a = acc + (nt * 2 + rt) * 4
                    for h in range(2):
                        e(f'v_pk_fma_f32 {vr(a+2*h,2)}, {vr(cs+nt*4+2*h,2)}, {vr(mm+rt*4,2)}, {vr(a+2*h,2)} op_sel_hi:[1,0,1]')
                    for h in range(2):
                        e(f'v_pk_mul_f32 {vr(a+2*h,2)}, {vr(a+2*h,2)}, {vr(mm+rt*4+2,2)} op_sel_hi:[1,0]')
                    e(f'v_cvt_pk_bf16_f32 v{a}, v{a}, v{a+1}')
                    e(f'v_cvt_pk_bf16_f32 v{a+1}, v{a+2}, v{a+3}')
                    e(f'buffer_store_dwordx2 {vr(a,2)}, v{vad+rt*12+nt}, s[{SWS}:{SWS+3}], s36 offen')
        else:
            e(f's_lshl_b32 s37, s3, 8'); e(f's_add_u32 s37, s37, {K0_ST}')
            e(f'v_lshlrev_b32 v{vt+3}, 2, v{vt}')
            e(f'v_add_u32 v{vt+3}, s37, v{vt+3}')
            for rt in range(2):
                e(f'v_sub_f32 v{st+rt}, 0, v{st+rt}')
                e(f'ds_write_b32 v{vt+3}, v{st+rt} offset:{rt*64}')
                e(f'ds_write_b32 v{vt+3}, v{st+2+rt} offset:{128+rt*64}')
            e(f'v_lshlrev_b32 v{vt+4}, 4, v{vt+1}')
            e(f'v_add_u32 v{vt+4}, s37, v{vt+4}')
            e(f'v_lshlrev_b32 v{vt+3}, 2, v{vt}')
            e(f'v_add_u32 v{vt+3}, {K0_CS}, v{vt+3}')
            e('s_waitcnt lgkmcnt(0)')
            mm = cs + 24
            for rt in range(2):
                e(f'ds_read_b128 {vr(mm+rt*4,4)}, v{vt+4} offset:{rt*64}')
                e(f'ds_read_b128 {vr(mm+8+rt*4,4)}, v{vt+4} offset:{128+rt*64}')
            e('s_waitcnt lgkmcnt(0)')
            for nt in range(12):
                e(f'ds_read_b32 v{cs+2*nt}, v{vt+3} offset:{nt*64}')
            e(f's_mov_b32 s38, {VT_LD}'); e(f's_mov_b32 s39, 4096'); e(f's_mov_b32 s40, {VT_LD+4096}')
            for nt in range(12):
                e(f's_waitcnt lgkmcnt({11-nt})')
                for rt in range(2):
                    a = acc + (nt * 2 + rt) * 4
                    for h in range(2):
                        e(f'v_pk_fma_f32 {vr(a+2*h,2)}, {vr(mm+rt*4+2*h,2)}, {vr(cs+2*nt,2)}, {vr(a+2*h,2)} op_sel_hi:[1,0,1]')
                    for h in range(2):
                        e(f'v_pk_mul_f32 {vr(a+2*h,2)}, {vr(a+2*h,2)}, {vr(mm+8+rt*4+2*h,2)}')
                    e(f'v_cvt_pk_bf16_f32 v{a}, v{a}, v{a+1}')
                    e(f'v_cvt_pk_bf16_f32 v{a+1}, v{a+2}, v{a+3}')
                    so = {(0, 0): '0', (1, 0): 's38', (0, 1): 's39', (1, 1): 's40'}[(rt, nt // 8)]
                    e(f'buffer_store_dwordx2 {vr(a,2)}, v{vad}, s[{SWS}:{SWS+3}], {so} offen offset:{(nt%8)*512}')
        endp(e, 0, SWS)

    e.label('k0_loader'); e.hist = []
    e('s_setprio 3')
    e('s_sub_u32 s33, s3, 4')
    vo = 8
    e('v_lshrrev_b32 v1, 4, v0'); e('v_lshrrev_b32 v3, 3, v0'); e('v_mul_u32_u24 v3, 1152, v3'); e('v_and_b32 v4, 7, v0'); e('v_xor_b32 v4, v4, v1')
    e('v_lshl_add_u32 v5, v4, 4, v3'); e('v_xor_b32 v4, 4, v4'); e('v_lshl_add_u32 v6, v4, 4, v3')
    for i in range(4): e(f'v_add_u32 v{vo+6+i}, {8*i*1152 - i*1024}, v{5 + (i & 1)}')
    for n in range(6):
        e(f'v_add_u32 v1, {64*n}, v0')
        e('v_mul_u32_u24 v2, 2731, v1'); e('v_lshrrev_b32 v2, 16, v2')
        e('v_mul_u32_u24 v3, 24, v2'); e('v_sub_u32 v3, v1, v3')
        e('v_bfe_u32 v4, v2, 1, 1'); e('v_bfe_u32 v5, v2, 3, 1'); e('v_lshl_add_u32 v4, v5, 1, v4')
        e('v_lshlrev_b32 v4, 1, v4'); e('v_xor_b32 v3, v3, v4')
        e('v_mul_u32_u24 v2, 3456, v2'); e('v_lshl_add_u32 v2, v3, 4, v2')
        e(f'v_subrev_u32 v{vo+n}, {(n % 4) * 1024}, v2')
    e(f's_mul_i32 s36, s7, 384'); e(f's_mul_i32 s37, s33, {16*3456}'); e('s_add_u32 s36, s36, s37')
    e('s_lshl_b32 s37, s6, 7'); e('s_lshl_b32 s38, s33, 5'); e('s_add_u32 s37, s37, s38'); e('s_mul_i32 s37, s37, 1152')
    e('s_mul_i32 s38, s33, 6144'); e('s_lshl_b32 s39, s33, 12'); e('s_add_u32 s39, s39, 24576')
    def issue(stage):
        o = (stage % D) * K0_SLOT
        e(f's_add_u32 m0, s39, {o}')
        for i in range(4): e(f'buffer_load_dwordx4 v{vo+6+i}, s[{SX}:{SX+3}], s37 offen offset:{i*1024} lds')
        for n in range(6):
            if n % 4 == 0: e(f's_add_u32 m0, s38, {o + n*1024}')
            e(f'buffer_load_dwordx4 v{vo+n}, s[{SW}:{SW+3}], s36 offen offset:{(n%4)*1024} lds')
        e(f's_add_u32 s36, s36, {64*3456}'); e('s_add_u32 s37, s37, 128')
    for s_ in range(OPT.get('k0i', 2)): issue(s_)
    wbase(0, 40)
    e('v_xor_b32 v40, s33, v41'); e('v_lshl_add_u32 v20, v40, 5, v42')
    for s_ in range(1, D): e(f'v_add_u32 v{20+s_}, {s_*K0_SLOT}, v20')
    for i in range(4): e(f'v_mov_b32 v{24+i}, {hex(ONES)}')
    for i in range(12): e(f'v_mov_b32 v{28+i}, 0')
    stamp(e, 1)
    issued = OPT.get('k0i', 2)
    for j in range(9):
        e(f's_waitcnt vmcnt({10*(issued-1-j)})')
        e('s_barrier')
        if j == 0:
            while issued < D: issue(issued); issued += 1
        elif issued < 9: issue(issued); issued += 1
        if j in (0, 4, 8): stamp(e, 2 + j // 4)
        for kk in range(2):
            for ti in range(3):
                d = 40 + (kk * 3 + ti) * 4
                for jj in range(2): e(f'ds_read_b64_tr_b16 {vr(d+2*jj,2)}, v{20 + j % D} offset:{kk*12288 + jj*1536 + ti*128}')
        e('s_waitcnt lgkmcnt(0)')
        for kk in range(2):
            for ti in range(3):
                e(f'v_mfma_f32_16x16x32_bf16 {vr(28+ti*4,4)}, v[24:27], {vr(40 + (kk*3+ti)*4,4)}, {vr(28+ti*4,4)}')
    e('v_and_b32 v1, 15, v0'); e('v_lshlrev_b32 v1, 2, v1'); e('s_lshl_b32 s38, s33, 6'); e(f's_add_u32 s38, s38, {K0_CS}')
    e('v_add_u32 v1, s38, v1')
    for ti in range(3): e(f'ds_write_b32 v1, v{28+ti*4} offset:{ti*256}')
    e('s_waitcnt lgkmcnt(0)')
    e('s_barrier')
    endp(e, 0, SWS)

    e.label('k0_pf'); e.hist = []
    e('s_mul_i32 s46, s4, 6'); e('s_add_u32 s46, s46, s5'); e('s_sub_u32 s46, s46, 26'); e('s_lshl_b32 s46, s46, 3'); e('s_add_u32 s46, s46, s3')
    e('v_lshlrev_b32 v1, 7, v0')
    e('s_lshl_b32 s47, s46, 13')
    e('s_cmp_ge_u32 s46, 243'); e(f's_cselect_b32 s46, {243*8192}, 0'); e('s_sub_u32 s46, s47, s46')
    e(f'buffer_load_dword v3, v1, s[{SW}:{SW+3}], s46 offen')
    e(f's_mov_b32 s46, {OPT.get("pfn", 4)*384*8192}')
    if OPT.get('pfwait', 1): e('s_waitcnt vmcnt(0)')
    e.label('k0_pf2')
    e('buffer_load_dword v3, v1, s[48:51], s47 offen'); e(f's_add_u32 s47, s47, {384*8192}')
    e('s_cmp_lt_u32 s47, s46'); e('s_cbranch_scc1 k0_pf2')
    stamp(e, 1)
    e('s_waitcnt vmcnt(0)')
    endp(e, 0, SWS)

    e.label('k0_ln'); e.hist = []
    LD = 1184
    e('s_lshl_b32 s6, s4, 3'); e('s_add_u32 s6, s6, s5'); e('s_sub_u32 s6, s6, 18')
    e('v_lshrrev_b32 v1, 4, v0'); e('v_and_b32 v2, 15, v0')
    e('s_lshl_b32 s7, s3, 2'); e('v_add_u32 v3, s7, v1')
    e('v_mul_u32_u24 v4, 1152, v3'); e('v_lshl_add_u32 v4, v2, 3, v4')
    e(f'v_mul_u32_u24 v5, {LD}, v3'); e('v_lshl_add_u32 v5, v2, 3, v5')
    e(f's_mul_i32 s32, s6, {32*1152}')
    xp, wp, xf = 16, 34, 52
    e('v_mov_b32 v8, 0'); e('v_mov_b32 v9, 0'); e('v_mov_b32 v10, 0'); e('v_mov_b32 v11, 0')
    e('v_lshrrev_b32 v6, 3, v0'); e(f'v_mul_u32_u24 v6, {HT_LD}, v6'); e('v_and_b32 v7, 7, v0'); e('v_lshl_add_u32 v6, v7, 4, v6')
    e('s_lshr_b32 s34, s3, 1'); e('s_mul_i32 s33, s6, 9'); e('s_add_u32 s33, s33, s34'); e(f's_mul_i32 s33, s33, {HT_LD}'); e(f's_add_u32 s33, s33, {HT_OFF + 4096}')
    e('s_and_b32 s34, s3, 5'); e('s_cmp_eq_u32 s34, 0'); e('s_cbranch_scc0 k0_ln_nf')
    e(f'buffer_store_dwordx4 v[8:11], v6, s[{SWS}:{SWS+3}], s33 offen')
    e.label('k0_ln_nf')
    for i in range(4): e(f'v_mov_b32 v{12+i}, {hex(ONES)}')
    e('v_bfe_u32 v6, v0, 1, 1'); e(f'v_mul_u32_u24 v6, {VT_LD}, v6'); e('v_and_b32 v7, 1, v0'); e('v_lshl_add_u32 v6, v7, 4, v6')
    e(f's_mul_i32 s33, s6, {2*VT_LD}'); e(f's_add_u32 s33, s33, {VT_OFF + 576*32}')
    e('s_cmp_eq_u32 s3, 1'); e('s_cbranch_scc0 k0_ln_no')
    e(f'buffer_store_dwordx4 v[12:15], v6, s[{SWS}:{SWS+3}], s33 offen')
    e.label('k0_ln_no')
    for c in range(9):
        e(f'buffer_load_dwordx2 {vr(xp+2*c,2)}, v4, s[{SX}:{SX+3}], s32 offen offset:{c*128}')
    for c in range(9):
        e(f'buffer_load_dwordx2 {vr(wp+2*c,2)}, v4, s[{SWO}:{SWO+3}], s32 offen offset:{c*128}')
    npf = OPT.get('pfln', 2)
    e('s_lshl_b32 s46, s6, 3'); e('s_add_u32 s46, s46, s3'); e(f's_add_u32 s46, s46, {OPT.get("pfn", 4)*384}'); e('s_lshl_b32 s46, s46, 13')
    e('v_lshlrev_b32 v92, 7, v0')
    e('s_waitcnt vmcnt(9)')
    for i in range(npf):
        e('buffer_load_dword v93, v92, s[48:51], s46 offen'); e(f's_add_u32 s46, s46, {512*8192}')
    stamp(e, 1)
    def unpack():
        for i in range(18):
            e(f'v_lshlrev_b32 v{xf+2*i}, 16, v{xp+i}')
            e(f'v_and_b32 v{xf+2*i+1}, 0xffff0000, v{xp+i}')
    def allred(v):
        for m in ('quad_perm:[1,0,3,2]', 'quad_perm:[2,3,0,1]', 'row_half_mirror', 'row_mirror'):
            e(f'v_add_f32_dpp v{v}, v{v}, v{v} {m} row_mask:0xf bank_mask:0xf')
    inv = hex(f2u(1.0 / 576))
    for rep in range(2):
        unpack()
        e(f'v_pk_add_f32 v[8:9], {vr(xf,2)}, {vr(xf+2,2)}')
        e(f'v_pk_add_f32 v[10:11], {vr(xf+4,2)}, {vr(xf+6,2)}')
        for i in range(4, 18):
            t = 8 + 2 * (i & 1)
            e(f'v_pk_add_f32 {vr(t,2)}, {vr(t,2)}, {vr(xf+2*i,2)}')
        e('v_pk_add_f32 v[8:9], v[8:9], v[10:11]')
        e('v_add_f32 v8, v8, v9')
        allred(8)
        e(f'v_mul_f32 v12, {inv}, v8')
        e('v_sub_f32 v14, 0, v12')
        e('v_mov_b32 v8, 0'); e('v_mov_b32 v9, 0'); e('v_mov_b32 v10, 0'); e('v_mov_b32 v11, 0')
        for i in range(18):
            t = 8 + 2 * (i & 1); d = 88 + 2 * (i & 1)
            e(f'v_pk_add_f32 {vr(d,2)}, {vr(xf+2*i,2)}, v[14:15] op_sel_hi:[1,0]')
            e(f'v_pk_fma_f32 {vr(t,2)}, {vr(d,2)}, {vr(d,2)}, {vr(t,2)}')
        e('v_pk_add_f32 v[8:9], v[8:9], v[10:11]')
        e('v_add_f32 v8, v8, v9')
        allred(8)
        e(f'v_mul_f32 v10, {inv}, v8')
        ln_scalars(e, 12, 10, 8)
        e('v_sub_f32 v14, 0, v12')
        for i in range(18):
            e(f'v_pk_add_f32 {vr(xf+2*i,2)}, {vr(xf+2*i,2)}, v[14:15] op_sel_hi:[1,0]')
            e(f'v_cvt_pk_bf16_f32 v{xp+i}, v{xf+2*i}, v{xf+2*i+1}')
        unpack()
        for i in range(18):
            e(f'v_pk_mul_f32 {vr(xf+2*i,2)}, {vr(xf+2*i,2)}, v[10:11] op_sel_hi:[1,0]')
            e(f'v_cvt_pk_bf16_f32 v{xp+i}, v{xf+2*i}, v{xf+2*i+1}')
    T2 = 32 * LD
    stamp(e, 2)
    for c in range(9): e(f'ds_write_b64 v5, {vr(xp+2*c,2)} offset:{c*128}')
    e(f's_waitcnt vmcnt({npf})')
    e(f'v_add_u32 v5, {T2}, v5')
    for c in range(9): e(f'ds_write_b64 v5, {vr(wp+2*c,2)} offset:{c*128}')
    e('v_lshlrev_b32 v6, 3, v1'); e('v_bfe_u32 v7, v0, 2, 2'); e('v_add_u32 v6, v6, v7'); e(f'v_mul_u32_u24 v6, {LD}, v6')
    e('v_and_b32 v7, 3, v0'); e('v_lshl_add_u32 v6, v7, 3, v6'); e('s_lshl_b32 s33, s3, 5'); e('v_add_u32 v6, s33, v6')
    e('s_lshl_b32 s33, s3, 4'); e('v_add_u32 v7, s33, v2')
    e(f'v_mul_u32_u24 v8, {HT_LD}, v7'); e('v_lshl_add_u32 v8, v1, 4, v8')
    e(f'v_mul_u32_u24 v9, {GE_LD}, v7'); e('v_lshl_add_u32 v9, v1, 4, v9')
    e('s_waitcnt lgkmcnt(0)')
    e('s_barrier')
    stamp(e, 3)
    for job in range(2):
        if job == 1:
            e('s_cmp_ge_u32 s6, 18'); e('s_cbranch_scc1 k0_done')
            e(f'v_add_u32 v6, {T2}, v6')
        base, ld, va = ((HT_OFF, HT_LD, 8), (GE_OFF + 4608 * 2, GE_LD, 9))[job]
        e('s_lshl_b32 s33, s6, 6'); e(f's_add_u32 s33, s33, {base}')
        lab = e.newlabel('k0_tr')
        for j in range(5):
            if j == 4:
                e('s_cmp_ge_u32 s3, 4'); e(f's_cbranch_scc1 {lab}')
            d = 16 + j * 4
            e(f'ds_read_b64_tr_b16 {vr(d,2)}, v6 offset:{j*256}')
            e(f'ds_read_b64_tr_b16 {vr(d+2,2)}, v6 offset:{j*256 + 4*LD}')
            e(f's_add_u32 s34, s33, {j*128*ld}')
            e('s_waitcnt lgkmcnt(0)')
            e(f'buffer_store_dwordx4 {vr(d,4)}, v{va}, s[{SWS}:{SWS+3}], s34 offen')
        e.label(lab)
        e('s_nop 1')
    e.label('k0_done')
    e('s_waitcnt vmcnt(0)')
    endp(e, 0, SWS)
    e.label('k0_exit')
    e('s_endpgm')
    return name, 256, K0_LDS
```

```python
import math
from asmlib import Emit, Alloc, vr, sr, f2u
from gen import *

K1_SLOT = 28672
SW1, SWS, SB1 = 8, 12, 16
MSK = 40
LOG2E = 1.4426950408889634

class Mix:
    def __init__(s, e, step, budget):
        s.e = e; s.step = step; s.budget = budget; s.acc = 0; s.on = False; s.total = 0
    def __call__(s, t):
        mn = t.split()[0]
        if s.on and mn.startswith('v_') and s.acc >= s.budget:
            s.acc = 0; s.step()
        s.e(t)
        c = 36 if 'mfma' in mn else 8 if (mn[2:5] in ('exp', 'rcp') or mn.startswith(('v_pk', 'buffer'))) else 4 if mn.startswith('v_') else 2
        s.acc += c; s.total += c
    def label(s, n): s.e.label(n)
    def newlabel(s, p): return s.e.newlabel(p)
    @property
    def hist(s): return s.e.hist
    @hist.setter
    def hist(s, v): s.e.hist = v

def attn(e, tag, unroll=0, vm=None, mid=None):
    A = Alloc('v', 1, 248)
    vK1 = A.get(); vK2 = A.get(); vVl = A.get(); vVm = A.get(); vV = A.get(); vO = A.get(); vO2 = A.get()
    q2r = A.get(); vm_ = A.get(); t0 = A.get(); nm = A.get(2, 2); cc = A.get(2, 2)
    PM = A.get(8); K2 = A.get(6, 2); Q1 = A.get(4, 4); Q2 = A.get(8, 2); KD = A.get(4, 4)
    VR = A.get(56, 4); T = A.get(144, 4)
    Tt = lambda t: T + 16 * t
    kloc = {2: Tt(1) + 8, 3: Tt(1) + 12, 4: Tt(2) + 8, 5: Tt(2) + 12, 6: Tt(3) + 8, 7: Tt(3) + 12, 8: Tt(4) + 8, 0: Tt(4) + 12, 1: KD}
    vloc = {0: VR, 8: VR + 8, 1: VR + 16, 2: VR + 24, 3: VR + 32, 4: VR + 40, 5: VR + 48, 6: VR, 7: VR + 8}
    vloc = {t: (b, b + 4) for t, b in vloc.items()}
    ws = f's[{SWS}:{SWS+3}]'
    e(f'v_and_b32 v{t0}, 31, v0'); e(f'v_lshrrev_b32 v{vm_}, 5, v0')
    e(f'v_lshlrev_b32 v{vK1}, 5, v{t0}'); e(f'v_lshl_add_u32 v{vK1}, v{vm_}, 4, v{vK1}')
    e(f'v_lshlrev_b32 v{vK2}, 3, v{t0}'); e(f'v_lshl_add_u32 v{vK2}, v{vm_}, 8, v{vK2}')
    e(f'v_cmp_gt_u32 vcc, 18, v{t0}')
    e(f'v_lshlrev_b32 v{vVl}, 4, v{vm_}'); e(f'v_add_u32 v{vVl}, {576*32}, v{vVl}')
    e(f'v_cndmask_b32 v{vVl}, v{vVl}, v{vK1}, vcc')
    e(f'v_mov_b32 v{vV}, 576'); e(f'v_cndmask_b32 v{vVm}, 0, v{vV}, vcc')
    e(f'v_lshlrev_b32 v{vO}, 1, v{t0}'); e(f'v_lshl_add_u32 v{vO}, v{vm_}, 14, v{vO}')
    e(f'v_lshl_add_u32 v{vO2}, v{vm_}, 30, v{vO}')
    e(f'v_lshlrev_b32 v{nm}, 2, v{vm_}'); e(f'v_sub_u32 v{nm}, v{t0}, v{nm}')
    for r in range(16):
        e(f'v_cmp_gt_i32 s[{MSK+2*r}:{MSK+2*r+1}], {8*(r>>2)+(r&3)}, v{nm}')
    e(f'v_mov_b32 v{nm}, 0xffff'); e(f'v_mov_b32 v{nm+1}, 0xffff0000')
    for i in range(8):
        e(f'v_cndmask_b32 v{PM+i}, 0, v{nm}, s[{MSK+4*i}:{MSK+4*i+1}]')
        e(f'v_cndmask_b32 v{t0}, 0, v{nm+1}, s[{MSK+4*i+2}:{MSK+4*i+3}]')
        e(f'v_or_b32 v{PM+i}, v{PM+i}, v{t0}')
    for i in (1, 3, 4, 6): e(f'v_mov_b32 v{Q2+i}, 0')
    e(f'v_mov_b32 v{K2+5}, 0')
    e(f'v_cmp_gt_u32 s[72:73], 32, v0')
    c = 18 ** -0.5 * LOG2E
    e(f'v_mov_b32 v{cc}, {hex(f2u(c))}')
    e('s_mov_b32 s38, 0xff800000')
    def kaddr(sj):
        e(f's_lshr_b32 s30, s{sj}, 6'); e('s_lshl_b32 s31, s4, 2'); e('s_add_u32 s30, s30, s31')
        e(f's_and_b32 s31, s{sj}, 63')
        e('s_lshl_b32 s24, s30, 16'); e('s_lshl_b32 s25, s31, 10'); e('s_add_u32 s24, s24, s25')
        e(f's_add_u32 s27, s24, {QB_OFF}')
        e(f's_add_u32 s24, s24, {KB_OFF - 8192}')
        e('s_add_u32 s25, s24, 4096'); e('s_add_u32 s26, s24, 8192')
        e('s_lshr_b32 s28, s30, 1'); e('s_lshl_b32 s28, s28, 14'); e('s_and_b32 s29, s30, 1'); e('s_lshl_b32 s29, s29, 2')
        e('s_add_u32 s28, s28, s29'); e('s_lshl_b32 s29, s31, 8'); e('s_add_u32 s28, s28, s29')
        e(f's_add_u32 s29, s28, {QB_OFF + X2_REL}')
        e(f's_add_u32 s28, s28, {KB_OFF + X2_REL - 2048}')
    if vm is None: vm = []
    def ld(tag_, text): e(text); vm.append(tag_)
    def wait(tag_):
        last = max(i for i, t in enumerate(vm) if t == tag_)
        e(f's_waitcnt vmcnt({min(63, len(vm) - 1 - last)})')
    def loadK(t): ld('K', f'buffer_load_dwordx4 {vr(kloc[t],4)}, v{vK1}, {ws}, s{24 + t // 4} offen offset:{(t % 4) * 1024}')
    def loadQ():
        ld('K', f'buffer_load_dwordx4 {vr(Q1,4)}, v{vK1}, {ws}, s27 offen')
        e(f'v_and_b32 v{t0}, 0xff, v{vK2}')
        ld('K', f'buffer_load_dword v{q2r}, v{t0}, {ws}, s29 offen')
        for i in range(5): ld('K', f'buffer_load_dword v{K2+i}, v{vK2}, {ws}, s28 offen offset:{i*512}')
        loadK(1)
    def loadV(t):
        e(f's_add_i32 s36, s33, {t - 8}'); e('s_max_i32 s36, s36, 0'); e(f's_mul_i32 s36, s36, {2*VT_LD}')
        e(f's_add_u32 s36, s36, {VT_OFF}'); e(f's_add_u32 s37, s36, {VT_LD}')
        ld(('V', t), f'buffer_load_dwordx4 {vr(vloc[t][0],4)}, v{vV}, {ws}, s36 offen')
        ld(('V', t), f'buffer_load_dwordx4 {vr(vloc[t][1],4)}, v{vV}, {ws}, s37 offen')
    done = f'k1_{tag}_done'; loop = f'k1_{tag}_loop'
    if not unroll: e('s_cmp_ge_u32 s20, s22'); e(f's_cbranch_scc1 {done}')
    kaddr(20)
    loadQ()
    for t in (8, 0, 7, 6, 5, 4, 3, 2): loadK(t)
    if not unroll:
        e('s_mov_b32 s23, 1')
        e.label(loop); e.hist = []
        vm[:] = ['K'] + ['S'] * 10
    for item in range(max(unroll, 1)):
        body(e, locals(), item == 0, (not unroll) or item < unroll - 1)
    if unroll: return
    assert vm[-10:] == ['S'] * 10 and vm[-11] == 'K', vm
    e('s_cmp_lt_u32 s20, s22'); e(f's_cbranch_scc1 {loop}')
    e.label(done)
    e.label('k1_fpf')
    q_first(e, 35, 4, 34)
    e('s_and_b32 s35, s35, 0xfffc0000'); e('s_and_b32 s34, s4, 1'); e(f's_mul_i32 s34, s34, {8*sum(FRN())}'); e('s_add_u32 s34, s34, s3')
    n27, n29, n30 = FRN()[3], FRN()[2], FRN()[0]
    e(f's_mov_b32 s36, {n27}'); e(f's_mov_b32 s37, {8*(2*n30 + n29)}')
    e('s_cmp_eq_u32 s5, 28'); e(f's_cselect_b32 s37, {8*(2*n30 + n29 + n27)}, s37')
    e('s_cmp_eq_u32 s5, 29'); e(f's_cselect_b32 s37, {16*n30}, s37'); e(f's_cselect_b32 s36, {n29}, s36')
    e('s_cmp_eq_u32 s5, 30'); e('s_cselect_b32 s37, 0, s37'); e(f's_cselect_b32 s36, {n30}, s36')
    e('s_cmp_eq_u32 s5, 31'); e(f's_cselect_b32 s37, {8*n30}, s37'); e(f's_cselect_b32 s36, {n30}, s36')
    e('s_add_u32 s34, s34, s37'); e('s_lshl_b32 s34, s34, 13'); e('s_add_u32 s35, s35, s34')
    e('v_lshlrev_b32 v255, 7, v0')
    e.label('k1_fpl')
    e('buffer_load_dword v254, v255, s[16:19], s35 offen'); e(f's_add_u32 s35, s35, {8*8192}')
    e('s_sub_u32 s36, s36, 1'); e('s_cmp_lg_u32 s36, 0'); e('s_cbranch_scc1 k1_fpl')
    stamp(e, 2)
    e('s_waitcnt vmcnt(0)')
    endp(e, 1, SWS)

def FRN():
    a, b, c = OPT.get('f30', 7), OPT.get('f29', 5), OPT.get('f27', 2)
    return [a, a, b, c, c]

def body(e, L, firstitem, nxt):
    globals().update({k: L[k] for k in ('vK1 vK2 vVl vVm vV vO vO2 q2r vm_ t0 nm cc PM K2 Q1 Q2 KD VR T Tt kloc vloc ws c kaddr vm ld wait loadK loadQ loadV unroll mid').split()})
    if firstitem and mid: mid(0)
    e('s_mov_b32 s32, s30'); e('s_mov_b32 s33, s31')
    e(f'v_mad_u32_u24 v{vV}, v{vVm}, s32, v{vVl}')
    for t in (0, 8, 1, 2, 3, 4, 5): loadV(t)
    if firstitem and mid: mid(1)
    if nxt:
        e('s_add_u32 s20, s20, s21'); e('s_sub_u32 s34, s22, 1'); e('s_min_u32 s34, s34, s20')
        kaddr(34)
    if not unroll:
        l1 = e.newlabel('k1a')
        e('s_cmp_eq_u32 s23, 0'); e(f's_cbranch_scc1 {l1}')
        e('s_waitcnt vmcnt(14)'); e('s_mov_b32 s23, 0')
        stamp(e, 1)
        e.label(l1)
    wait('K')
    e(f'v_cndmask_b32 v{Q2}, 0, v{q2r}, s[72:73]'); e(f'v_cndmask_b32 v{Q2+5}, 0, v{q2r}, s[72:73]')
    e(f'v_cndmask_b32 v{Q2+2}, v{q2r}, 0, s[72:73]'); e(f'v_cndmask_b32 v{Q2+7}, v{q2r}, 0, s[72:73]')
    order = [8, 0, 7, 6, 5, 4, 3, 2, 1]
    first = [True]
    def inval(t):
        if t == 8: return
        l = e.newlabel('k1v')
        e(f's_cmp_ge_u32 s33, {8 - t}'); e(f's_cbranch_scc1 {l}')
        h = list(e.hist)
        on = getattr(e, 'on', False)
        if on: e.on = False
        for r in range(16): e(f'v_mov_b32 v{Tt(t)+r}, s38')
        if on: e.on = True; e.acc -= 64; e.total -= 64
        e.label(l); e.hist = h + [None]
    def mx(t):
        b = Tt(t)
        for r in range(0, 16, 2):
            if first[0]: e(f'v_max_f32 v{vm_}, v{b+r}, v{b+r+1}'); first[0] = False
            else: e(f'v_max3_f32 v{vm_}, v{b+r}, v{b+r+1}, v{vm_}')
    def post(t):
        if t == 8: return
        inval(t)
        if t == 0:
            for r in range(16):
                e(f'v_cndmask_b32 v{Tt(0)+r}, v{Tt(8)+r}, v{Tt(0)+r}, s[{MSK+2*r}:{MSK+2*r+1}]')
        mx(t)
    for n, t in enumerate(order):
        a = vr(Tt(t), 16)
        e(f'v_mfma_f32_32x32x16_bf16 {a}, {vr(kloc[t],4)}, {vr(Q1,4)}, 0')
        e(f'v_mfma_f32_32x32x8bf16_1k {a}, {vr(K2 + (t // 4) * 2, 2)}, {vr(Q2 + ((t >> 1) & 1) * 4 + (t & 1) * 2, 2)}, {a}')
        if n >= 2: post(order[n - 2])
    if nxt: loadQ()
    post(2)
    post(1)
    e(f'v_mov_b32 v{t0}, v{vm_}')
    e(f'v_permlane32_swap_b32 v{vm_}, v{t0}')
    e(f'v_max_f32 v{vm_}, v{vm_}, v{t0}')
    e(f'v_mul_f32 v{nm}, {hex(f2u(-c))}, v{vm_}')
    O = vr(Tt(8), 16)
    pend = []
    def pv(t, p, firstc=False):
        wait(('V', t))
        e(f'v_mfma_f32_32x32x16_bf16 {O}, {vr(vloc[t][0],4)}, {vr(p,4)}, {"0" if firstc else O}')
        e(f'v_mfma_f32_32x32x16_bf16 {O}, {vr(vloc[t][1],4)}, {vr(p+4,4)}, {O}')
    for t in range(8):
        b = Tt(t)
        for r in range(0, 16, 2):
            if OPT.get('pk', 1): e(f'v_pk_fma_f32 {vr(b+r,2)}, {vr(b+r,2)}, {vr(cc,2)}, {vr(nm,2)} op_sel_hi:[1,0,0]')
            else:
                e(f'v_fma_f32 v{b+r}, v{b+r}, v{cc}, v{nm}'); e(f'v_fma_f32 v{b+r+1}, v{b+r+1}, v{cc}, v{nm}')
        for r in range(16):
            e(f'v_exp_f32 v{b+r}, v{b+r}')
            if r == 3 and pend:
                for f in pend: f()
                pend = []
        for i in range(8): e(f'v_cvt_pk_bf16_f32 v{b+i}, v{b+2*i}, v{b+2*i+1}')
        if t == 0:
            for i in range(8):
                e(f'v_and_b32 v{b+8+i}, v{PM+i}, v{b+i}')
                e(f'v_xor_b32 v{b+i}, v{b+i}, v{b+8+i}')
            def f0():
                pv(0, Tt(0) + 8, True); pv(8, Tt(0)); loadV(6); loadV(7)
            pend.append(f0)
        else:
            if t <= 4 and nxt:
                for kt in {1: (2, 3), 2: (4, 5), 3: (6, 7), 4: (8, 0)}[t]: loadK(kt)
            pend.append(lambda t=t: pv(t, Tt(t)))
    for f in pend: f()
    e(f's_mul_i32 s36, s32, {18*4096}'); e('s_lshl_b32 s37, s33, 6'); e('s_add_u32 s36, s36, s37'); e(f's_add_u32 s36, s36, {OT_OFF}')
    o = Tt(8)
    e(f'v_rcp_f32 v{nm}, v{o+10}')
    for r in range(0, 10, 2):
        e(f'v_pk_mul_f32 {vr(o+r,2)}, {vr(o+r,2)}, {vr(nm,2)} op_sel_hi:[1,0]')
    for r in range(0, 10, 2):
        e(f'v_cvt_pk_bf16_f32 v{o+r}, v{o+r}, v{o+r+1}')
    for r in range(10):
        e(f's_add_u32 s37, s36, {(8*(r>>2)+(r&3))*4096}')
        op = 'buffer_store_short_d16_hi' if r & 1 else 'buffer_store_short'
        ld('S', f'{op} v{o+(r&~1)}, v{vO2 if r >= 8 else vO}, {ws}, s37 offen')

def gen_k1(e, opts):
    name = 'k1_gemm1_attn_kernel'
    D = opts.get('k1d', 5); NA = opts.get('na', 3)
    header(e, name)
    e('s_cmp_ge_u32 s2, 256'); e('s_cbranch_scc1 k1_exit')
    dstart(e)
    e('s_load_dwordx4 s[24:27], s[0:1], 32')
    e('s_load_dwordx2 s[30:31], s[0:1], 80')
    e('s_load_dwordx2 s[28:29], s[0:1], 48')
    e('v_lshrrev_b32 v1, 6, v0')
    e('v_and_b32 v0, 63, v0')
    e('v_readfirstlane_b32 s3, v1')
    e('s_and_b32 s4, s2, 7'); e('s_lshr_b32 s5, s2, 3')
    e('s_waitcnt lgkmcnt(0)')
    srd(e, SW1, 24, W1_BYTES); srd(e, SB1, 26, 4608 * 2); srd(e, SWS, 30, WS_USED)
    e('s_cmp_ge_u32 s5, 27'); e('s_cbranch_scc1 k1_free')
    e('s_mul_i32 s6, s4, 27'); e('s_add_u32 s6, s6, s5')
    e('s_mul_i32 s7, s6, 171'); e('s_lshr_b32 s7, s7, 10')
    e('s_mul_i32 s20, s7, 6'); e('s_sub_u32 s6, s6, s20')
    e('s_cmp_ge_u32 s3, 4'); e('s_cbranch_scc1 k1_loader')
    e('s_setprio 2')
    A = Alloc('v', 1, 256)
    NS = (D + 1) // 2
    va = A.get(NS); vb = A.get(4 * NS); vt = A.get(6); vg = A.get()
    cs = A.get(8, 2)
    acc = A.get(48, 4); fr = A.get(64, 4)
    e('s_lshl_b32 s20, s7, 8'); e('s_lshl_b32 s21, s3, 6'); e('s_add_u32 s20, s20, s21')
    e(f'v_lshrrev_b32 v{vt}, 5, v0')
    e(f'v_lshlrev_b32 v{vt+1}, 3, v{vt}')
    br = 248
    for q in range(4): e(f'buffer_load_dwordx2 {vr(br+2*q,2)}, v{vt+1}, s[{SB1}:{SB1+3}], s20 offen offset:{q*16}')
    e(f'v_bfe_u32 v{vt+2}, v0, 2, 2')
    e(f'v_add_u32 v{vt+3}, v{vt+1}, v{vt+2}'); e(f'v_lshlrev_b32 v{va}, 8, v{vt+3}')
    e(f'v_xor_b32 v{vt+3}, s3, v{vt+2}'); e(f'v_lshl_add_u32 v{va}, v{vt+3}, 6, v{va}')
    e(f'v_bfe_u32 v{vt+3}, v0, 4, 1'); e(f'v_lshl_add_u32 v{va}, v{vt+3}, 5, v{va}')
    e(f'v_and_b32 v{vt+3}, 3, v0'); e(f'v_lshl_add_u32 v{va}, v{vt+3}, 3, v{va}')
    e(f'v_and_b32 v{vt+4}, 31, v0'); e(f'v_bfe_u32 v{vt+3}, v0, 1, 3'); e(f'v_xor_b32 v{vt+3}, v{vt+3}, v{vt}')
    for ks in range(4):
        e(f'v_xor_b32 v{vt+5}, {2*ks}, v{vt+3}'); e(f'v_lshlrev_b32 v{vt+5}, 4, v{vt+5}')
        e(f'v_lshl_add_u32 v{vb+ks}, v{vt+4}, 7, v{vt+5}')
    for s in range(1, NS):
        e(f'v_add_u32 v{va+s}, {2*s*K1_SLOT}, v{va}')
        for ks in range(4): e(f'v_add_u32 v{vb+4*s+ks}, {2*s*K1_SLOT}, v{vb+ks}')
    e('s_mul_i32 s21, s6, 96'); e(f'v_add_u32 v{vt+4}, s21, v{vt+4}'); e(f'v_mul_u32_u24 v{vg}, {GE_LD}, v{vt+4}')
    e(f'v_lshl_add_u32 v{vg}, v{vt}, 4, v{vg}')
    e(f's_add_u32 s22, s20, {GE_OFF}')
    e('s_waitcnt vmcnt(0)')
    for q in range(4):
        for i in range(2):
            e(f'v_lshlrev_b32 v{acc+4*q+2*i}, 16, v{br+2*q+i}'); e(f'v_and_b32 v{acc+4*q+2*i+1}, 0xffff0000, v{br+2*q+i}')
    for r in range(16):
        e(f'v_mov_b32 v{acc+16+r}, v{acc+r}'); e(f'v_mov_b32 v{acc+32+r}, v{acc+r}')
    def reads(slot, ks):
        s, o = slot // 2, (slot % 2) * K1_SLOT
        d = fr + ks * 16
        L = [f'ds_read_b64_tr_b16 {vr(d,2)}, v{va+s} offset:{o + ks*4096}',
             f'ds_read_b64_tr_b16 {vr(d+2,2)}, v{va+s} offset:{o + ks*4096 + 1024}']
        for dt in range(3): L.append(f'ds_read_b128 {vr(d+4+4*dt,4)}, v{vb+4*s+ks} offset:{o + 16384 + dt*4096}')
        return L
    X = opts.get('k1x', 0)
    def stage(slot, last=False, fill=False):
        if X == 2:
            if not last: e('s_barrier')
            return
        for ks in range(4):
            nslot, nks = (slot, ks + 2) if ks < 2 else ((slot + 1) % D, ks - 2)
            R = reads(nslot, nks) if not (last and ks >= 2) else []
            if ks == 2: e('s_waitcnt lgkmcnt(0)')
            elif ks != 3: e('s_waitcnt lgkmcnt(5)')
            d = fr + ks * 16
            for dt in range(3):
                a = vr(acc + 16 * dt, 16)
                e(f'v_mfma_f32_32x32x16_bf16 {a}, {vr(d,4)}, {vr(d+4+4*dt,4)}, {a}')
                if dt == 0 and ks == 2 and not last: e('s_barrier')
                if fill and ks == 1 and dt == 2:
                    e(f'buffer_store_dwordx4 {vr(br,4)}, v{br+4}, s[{SWS}:{SWS+3}], s24 offen{ZF}'); e('s_add_u32 s24, s24, 1024')
                for x in R[2*dt:2*dt+2]: e(x)
    if not opts.get('alias', 0):
        e('s_mul_i32 s24, s7, 6'); e('s_add_u32 s24, s24, s6'); e('s_lshl_b32 s24, s24, 2'); e('s_add_u32 s24, s24, s3')
        e('s_mul_i32 s24, s24, 10240'); e(f's_add_u32 s24, s24, {PART_OFF}')
        for i in range(4): e(f'v_mov_b32 v{br+i}, 0')
        e(f'v_lshlrev_b32 v{br+4}, 4, v0')
        ZF = {0: '', 1: ' sc1', 2: ' sc0 sc1', 3: ' nt'}[opts.get('zf', 1)]
    stamp(e, 1)
    e('s_barrier')
    stamp(e, 2)
    for ks in range(2):
        for x in reads(0, ks): e(x)
    nit = 32 // D if 32 % D else 32 // D - 1
    e(f's_mov_b32 s23, {nit}')
    e.label('k1_cloop'); e.hist = []
    for s in range(D): stage(s, fill=(s in (1, 3) and not opts.get('alias', 0)))
    e('s_sub_u32 s23, s23, 1'); e('s_cmp_lg_u32 s23, 0'); e('s_cbranch_scc1 k1_cloop')
    rem = 32 - nit * D
    for s in range(rem): stage(s, last=(s == rem - 1))
    stamp(e, 3)
    c0 = -2 * 0.7978845608028654 * LOG2E; c1 = c0 * 0.044715
    e(f'v_mov_b32 v{cs}, {hex(f2u(c0))}'); e(f'v_mov_b32 v{cs+2}, {hex(f2u(c1))}'); e(f'v_mov_b32 v{cs+4}, 1.0')
    e(f's_add_u32 s24, s22, {32*GE_LD}'); e(f's_add_u32 s25, s22, {64*GE_LD}')
    for dt in range(3):
        a = acc + 16 * dt; t = fr + 16 * dt
        for r in range(0, 16, 2): e(f'v_pk_mul_f32 {vr(t+r,2)}, {vr(a+r,2)}, {vr(a+r,2)}')
        for r in range(0, 16, 2): e(f'v_pk_fma_f32 {vr(t+r,2)}, {vr(t+r,2)}, {vr(cs+2,2)}, {vr(cs,2)} op_sel_hi:[1,0,0]')
        for r in range(0, 16, 2): e(f'v_pk_mul_f32 {vr(t+r,2)}, {vr(t+r,2)}, {vr(a+r,2)}')
        for r in range(16): e(f'v_exp_f32 v{t+r}, v{t+r}')
        for r in range(0, 16, 2): e(f'v_pk_add_f32 {vr(t+r,2)}, {vr(t+r,2)}, {vr(cs+4,2)} op_sel_hi:[1,0]')
        for r in range(16): e(f'v_rcp_f32 v{t+r}, v{t+r}')
        for r in range(0, 16, 2): e(f'v_pk_mul_f32 {vr(a+r,2)}, {vr(a+r,2)}, {vr(t+r,2)}')
        for i in range(8): e(f'v_cvt_pk_bf16_f32 v{a+i}, v{a+2*i}, v{a+2*i+1}')
        for hf in range(2):
            p = a + 4 * hf
            e(f'v_permlane32_swap_b32 v{p}, v{p+2}'); e(f'v_permlane32_swap_b32 v{p+1}, v{p+3}')
            e(f'buffer_store_dwordx4 {vr(p,4)}, v{vg}, s[{SWS}:{SWS+3}], s{(22,24,25)[dt]} offen offset:{hf*32}')
    endp(e, 1, SWS)

    e.label('k1_loader'); e.hist = []
    e('s_setprio 3')
    vo = 248
    SA, SB, SP = 76, 96, 16
    srd(e, SP, 28, W1_BYTES)
    e('v_lshrrev_b32 v1, 4, v0'); e('v_bfe_u32 v2, v0, 2, 2'); e('v_xor_b32 v2, v2, v1'); e('v_lshlrev_b32 v2, 6, v2')
    e('v_and_b32 v3, 3, v0'); e('v_lshl_add_u32 v2, v3, 4, v2')
    e('v_mul_u32_u24 v3, 9216, v1'); e('v_add_u32 v2, v2, v3')
    e('v_lshrrev_b32 v3, 3, v0'); e(f'v_mul_u32_u24 v3, {HT_LD}, v3'); e('v_and_b32 v4, 7, v0'); e('v_xor_b32 v4, v4, v1')
    e('v_lshl_add_u32 v5, v4, 4, v3')
    e('v_xor_b32 v4, 4, v4'); e('v_lshl_add_u32 v6, v4, 4, v3')
    e('s_lshl_b32 s22, s7, 8')
    e(f's_mul_i32 s23, s6, {32*12288 if opts.get("xc", 0) else 96*HT_LD}')
    e('s_sub_u32 s39, s3, 4'); e('s_mul_i32 s39, s39, 7168')
    for lw in (1, 2, 3):
        e(f's_cmp_eq_u32 s3, {4+lw}'); e(f's_cbranch_scc1 k1_ls{lw}')
    h0 = list(e.hist)
    for lw in range(4):
        if lw: e.label(f'k1_ls{lw}'); e.hist = list(h0)
        for n in range(7):
            i = 7 * lw + n; io = n % 4
            if i < 16: e(f'v_add_u32 v{vo+n}, {4*i*9216 - io*1024}, v2')
            elif opts.get('xc', 0): e('v_lshlrev_b32 v7, 4, v0'); e(f'v_add_u32 v{vo+n}, {HT_OFF + (i-16)*1024 - io*1024}, v7')
            else: e(f'v_add_u32 v{vo+n}, {HT_OFF + 8*(i-16)*HT_LD - io*1024}, v{5 + (i & 1)}')
        for S, isw, so, st in ((SA, lw < 3, 74, 100), (SB, lw < 2, 75, 101)):
            if isw: srd(e, S, 24, W1_BYTES); e(f's_mov_b32 s{so}, s22'); e(f's_mov_b32 s{st}, {64*9216}')
            else: srd(e, S, 30, WS_USED); e(f's_mov_b32 s{so}, s23'); e(f's_mov_b32 s{st}, {12288 if opts.get("xc", 0) else 128}')
        if lw < 3: e('s_branch k1_lgo')
    e.label('k1_lgo'); e.hist = []
    PL = opts.get('pl', 7); NPS = 0
    FR = 16 * sum(FRN())
    TB = opts.get('tb', 1)
    e('s_mul_i32 s34, s4, 27'); e('s_add_u32 s34, s34, s5'); e('s_lshl_b32 s34, s34, 2'); e('s_add_u32 s34, s34, s3'); e('s_sub_u32 s34, s34, 4')
    tbs = [35, 6, 7][:TB]
    for r, sd in enumerate(tbs):
        e(f's_add_u32 s{sd}, s34, {864*r + FR}'); e(f's_add_u32 s33, s34, {864*r}')
        for th in (672 - FR, 1312 - 2*FR, 1952 - 3*FR):
            e(f's_cmp_ge_u32 s33, {th}'); e(f's_cselect_b32 s32, {FR}, 0'); e(f's_add_u32 s{sd}, s{sd}, s32')
        e(f's_lshl_b32 s{sd}, s{sd}, 13')
    SPF = opts.get('spf', 0)
    if SPF: e('s_add_u32 s35, s35, 124')
    e('v_lshlrev_b32 v255, 7, v0')
    DFL = {0: '', 1: ' nt', 2: ' sc1', 3: ' sc0 sc1', 4: ' sc0 sc1 nt', 5: ' sc0'}[opts.get('dfl', 0)]
    PFL = {0: '', 1: ' nt', 2: ' sc1', 3: ' sc0 sc1', 4: ' sc0 sc1 nt'}[opts.get('pfl', 0)]
    NA2 = opts.get('na2', 4)
    per = 4 + NA2
    e(f's_mul_i32 s20, s5, {per}'); e(f's_add_u32 s22, s20, {per}'); e('s_add_u32 s20, s20, s3'); e('s_sub_u32 s20, s20, 4'); e('s_mov_b32 s21, 4')
    if 0 < NA2 < 4: e(f's_cmp_ge_u32 s3, {4+NA2}'); e('s_cbranch_scc1 k1_lone')
    h0 = list(e.hist)
    for na in ((2, 1) if 0 < NA2 < 4 else (2,) if NA2 else (1,)):
        if na == 1 and NA2: e.label('k1_lone'); e.hist = list(h0)
        for dry in (True, False):
            ee = Emit() if dry else e
            vm = []; st = dict(j=1, pf=0)
            def issue(stg):
                for n in range(7 if X != 1 else 0):
                    if n % 4 == 0: ee(f's_add_u32 m0, s39, {(stg % D)*K1_SLOT + n*1024}')
                    S, so = (SA, 74) if n < 2 else (SB, 75)
                    ee(f'buffer_load_dwordx4 v{vo+n}, s[{S}:{S+3}], s{so} offen offset:{(n%4)*1024}{DFL} lds'); vm.append(('D', stg))
                if opts.get('xs', 0) and stg % 4 == 3:
                    for _ in range(3): ee('s_sub_u32 s74, s74, s100'); ee('s_sub_u32 s75, s75, s101')
                else:
                    ee('s_add_u32 s74, s74, s100'); ee('s_add_u32 s75, s75, s101')
            def waitD(stg):
                idx = [i for i, t in enumerate(vm) if t == ('D', stg)]
                if idx: ee(f's_waitcnt vmcnt({min(63, len(vm) - 1 - idx[-1])})')
            def step():
                j = st['j']
                if j > 31: return
                st['j'] += 1
                ee('s_setprio 3')
                waitD(j); ee('s_barrier')
                if j - 1 + D < 32: issue(j - 1 + D)
                if j - 1 + D == 31 + opts.get('tbd', 0):
                    for sd in tbs[SPF:]:
                        ee(f's_mov_b32 m0, {D*K1_SLOT}')
                        ee(f'buffer_load_dword v255, s[{SP}:{SP+3}], s{sd} offen lds'); vm.append('pf')
                if SPF:
                    for _ in range(2 if j == 1 else 1):
                        ee('s_waitcnt lgkmcnt(13)'); ee(f's_buffer_load_dwordx2 vcc, s[{SP}:{SP+3}], s35'); ee('s_add_u32 s35, s35, 256')
                if opts.get('pf2', 0) and j >= opts.get('pf2s', 1) and st['pf'] < NPS:
                    ee(f's_mov_b32 m0, {D*K1_SLOT}')
                    ee(f'buffer_load_dword v255, s[{SP}:{SP+3}], s35 offen{PFL} lds'); vm.append('pf')
                    ee(f's_add_u32 s35, s35, {PL*128}'); st['pf'] += 1
                ee(f's_setprio {opts.get("aprio", 3)}')
            def mid(k):
                if k == 0:
                    waitD(0); ee('s_barrier'); stamp(ee, 2); issue(2)
                else:
                    for stg in range(3, D): issue(stg)
                    ee(f's_setprio {opts.get("aprio", 3)}'); M.on = True; M.acc = 0; M.total = 0
            issue(0); issue(1)
            M = Mix(ee, step, 1 << 30 if dry else budget)
            attn(M, f'l{na}', unroll=na, vm=vm, mid=mid)
            if dry: budget = M.total // opts.get('spread', 27)
        stamp(e, 3)
        while st['j'] <= 31: step()

        e('s_waitcnt vmcnt(0) lgkmcnt(0)')
        endp(e, 1, SWS)

    e.label('k1_free'); e.hist = []
    e('s_sub_u32 s20, s5, 27'); e('s_lshl_b32 s20, s20, 3'); e('s_add_u32 s20, s20, s3'); e(f's_add_u32 s20, s20, {27*per}')
    n2 = min(5, (256 - 27*per - 40 + 7) // 8) if 256 - 27*per > 40 else 0
    srd(e, 16, 28, W1_BYTES)
    if per == 8:
        e('s_cmp_ge_u32 s5, 30'); e('s_cbranch_scc1 k1_fpf')
        e('s_mov_b32 s21, 16'); e('s_mov_b32 s22, 248')
        e('s_cmp_eq_u32 s5, 29'); e('s_cselect_b32 s22, 256, s22'); e('s_cselect_b32 s23, 16, 0'); e('s_add_u32 s20, s20, s23')
    else:
        e('s_mov_b32 s21, 40'); e('s_mov_b32 s22, 256')
    attn(e, 'f')
    e.label('k1_exit')
    e('s_endpgm')
    return name, 256, D * K1_SLOT + 256
```

```python
from asmlib import Emit, Alloc, vr, sr, f2u
from gen import *

K2_SLOT = 34816
SW2, SWS, SX, SB2, SO = 8, 12, 16, 20, 24
OWN = {0: range(0, 5), 1: range(5, 9), 2: range(9, 14), 3: range(14, 18)}

def gen_k2(e, opts):
    name = 'k2_gemm2_kernel'
    D = opts.get('k2d', 4)
    header(e, name)
    ws = f's[{SWS}:{SWS+3}]'
    e('s_cmp_ge_u32 s2, 256'); e('s_cbranch_scc1 k2_exit')
    dstart(e)
    e('s_load_dwordx2 s[28:29], s[0:1], 0')
    e('s_load_dwordx4 s[32:35], s[0:1], 48')
    e('s_load_dwordx2 s[36:37], s[0:1], 64')
    e('s_load_dwordx2 s[30:31], s[0:1], 80')
    e('v_lshrrev_b32 v1, 6, v0')
    e('v_and_b32 v0, 63, v0')
    e('v_readfirstlane_b32 s3, v1')
    e('s_and_b32 s4, s2, 7'); e('s_lshr_b32 s5, s2, 3')
    e('s_lshr_b32 s6, s4, 1')
    e('s_and_b32 s7, s4, 1'); e('s_lshl_b32 s7, s7, 3'); e('s_lshr_b32 s38, s5, 2'); e('s_add_u32 s7, s7, s38')
    e('s_and_b32 s5, s5, 3')
    e('s_mul_i32 s39, s6, 20'); e('s_cmp_lg_u32 s6, 0'); e('s_addc_u32 s39, s39, 0')
    e('s_cmp_eq_u32 s6, 0'); e('s_cselect_b32 s40, 21, 20')
    e('s_waitcnt lgkmcnt(0)')
    srd(e, SW2, 32, W1_BYTES); srd(e, SWS, 30, WS_USED); srd(e, SX, 28, X_BYTES); srd(e, SB2, 34, 4096); srd(e, SO, 36, X_BYTES)
    e('s_cmp_ge_u32 s3, 4'); e('s_cbranch_scc1 k2_loader')
    e('s_setprio 2')
    A = Alloc('v', 1, 256)
    vw0 = A.get(2); vg0 = A.get(2); vw = A.get(2); vg = A.get(2); vt = A.get(6); vo = A.get(); vp = A.get(); vb2 = A.get(2, 2)
    xr = A.get(10, 2)
    acc = A.get(72, 4); gr = A.get(24, 4); wr = A.get(16, 4); pr = A.get(60, 4)
    e(f'v_and_b32 v{vt}, 15, v0'); e(f'v_lshrrev_b32 v{vt+1}, 4, v0')
    e('s_lshl_b32 s41, s7, 7'); e('s_lshl_b32 s42, s3, 5'); e('s_add_u32 s41, s41, s42')
    e('s_lshr_b32 s42, s6, 1'); e('s_lshl_b32 s42, s42, 4'); e('s_add_u32 s41, s41, s42')
    e(f'v_add_u32 v{vt+2}, s41, v{vt}')
    e(f'v_mul_u32_u24 v{vo}, 1152, v{vt+2}'); e(f'v_lshl_add_u32 v{vo}, v{vt+1}, 3, v{vo}')
    e(f'v_lshlrev_b32 v{vt+2}, 1, v{vt+2}')
    e('s_mul_i32 s43, s5, 288'); e('s_and_b32 s42, s6, 1'); e('s_mul_i32 s42, s42, 160'); e('s_add_u32 s43, s43, s42')
    e(f'buffer_load_ushort v{vb2}, v{vt+2}, s[{SB2}:{SB2+3}], 0 offen')
    for i in range(5):
        e(f'buffer_load_dwordx2 {vr(xr+2*i,2)}, v{vo}, s[{SX}:{SX+3}], s43 offen offset:{i*32}')
    e(f'v_bfe_u32 v{vt+3}, v0, 2, 2')
    e(f'v_lshl_add_u32 v{vt+4}, v{vt+1}, 3, v{vt+3}'); e(f'v_lshlrev_b32 v{vw0}, 8, v{vt+4}')
    e(f'v_and_b32 v{vt+4}, 3, v0'); e(f'v_lshl_add_u32 v{vw0}, v{vt+4}, 3, v{vw0}')
    e(f'v_and_b32 v{vt+4}, 1, v{vt+1}'); e(f'v_lshl_add_u32 v{vt+3}, v{vt+4}, 2, v{vt+3}')
    e('s_lshl_b32 s42, s3, 1'); e(f'v_xor_b32 v{vt+3}, s42, v{vt+3}')
    e(f'v_xor_b32 v{vt+4}, 1, v{vt+3}')
    e(f'v_lshl_add_u32 v{vw0+1}, v{vt+4}, 5, v{vw0}'); e(f'v_lshl_add_u32 v{vw0}, v{vt+3}, 5, v{vw0}')
    e(f'v_lshrrev_b32 v{vt+3}, 1, v{vt}'); e(f'v_xor_b32 v{vt+3}, v{vt+3}, v{vt+1}')
    e(f'v_lshlrev_b32 v{vt+4}, 7, v{vt}')
    e(f'v_lshl_add_u32 v{vg0}, v{vt+3}, 4, v{vt+4}')
    e(f'v_xor_b32 v{vt+3}, 4, v{vt+3}'); e(f'v_lshl_add_u32 v{vg0+1}, v{vt+3}, 4, v{vt+4}')
    for i in range(2): e(f'v_mov_b32 v{vw+i}, v{vw0+i}'); e(f'v_mov_b32 v{vg+i}, v{vg0+i}')
    for i in range(72): e(f'v_mov_b32 v{acc+i}, 0')
    e(f'v_lshlrev_b32 v{vp}, 4, v0')
    e('s_mov_b32 s44, 0')
    lg = []
    def rdW(kk):
        for st in range(2):
            d = wr + kk * 8 + st * 4
            for j in range(2):
                e(f'ds_read_b64_tr_b16 {vr(d+2*j,2)}, v{vw+st} offset:{kk*8192 + j*1024}'); lg.append(('W', kk))
    def rdG(u):
        kk, dt = divmod(u, 9)
        if dt == 0: rdW(kk)
        e(f'ds_read_b128 {vr(gr + (u % 6) * 4, 4)}, v{vg+kk} offset:{16384 + dt*2048}'); lg.append(('G', u))
    def waitfor(u):
        idx = [i for i, t in enumerate(lg) if t == ('G', u)]
        if not idx: return
        k = len(lg) - 1 - idx[-1]
        e(f's_waitcnt lgkmcnt({k})')
        del lg[:idx[-1] + 1]
    X = opts.get('k1x', 0)
    def stage(last):
        if X == 2:
            if not last: e('s_barrier')
            return
        for u in range(18):
            kk, dt = divmod(u, 9)
            if u == 14:
                e('s_waitcnt lgkmcnt(0)'); lg.clear()
            else: waitfor(u)
            for st in range(2):
                a = vr(acc + (st * 9 + dt) * 4, 4)
                e(f'v_mfma_f32_16x16x32_bf16 {a}, {vr(gr + (u % 6) * 4, 4)}, {vr(wr + kk*8 + st*4, 4)}, {a}')
                if st == 0:
                    if u == 14 and not last:
                        e(f's_add_u32 s44, s44, {K2_SLOT}'); e(f's_cmp_ge_u32 s44, {D*K2_SLOT}'); e('s_cselect_b32 s44, 0, s44')
                        e('s_barrier')
                        for i in range(2): e(f'v_add_u32 v{vw+i}, s44, v{vw0+i}'); e(f'v_add_u32 v{vg+i}, s44, v{vg0+i}')
                    if u < 12: rdG(u + 4)
                    elif u == 12: rdG(16);
                    elif u >= 14 and not last: rdG(u - 14)
                elif u == 12: rdG(17)
    e('s_barrier')
    stamp(e, 1)
    for u in range(4): rdG(u)
    lg0 = list(lg)
    e('s_sub_u32 s45, s40, 1')
    e.label('k2_cloop'); e.hist = []
    stage(False)
    assert lg == lg0, (lg, lg0)
    e('s_sub_u32 s45, s45, 1'); e('s_cmp_lg_u32 s45, 0'); e('s_cbranch_scc1 k2_cloop')
    stage(True)
    stamp(e, 2)
    e('s_lshl_b32 s46, s7, 2'); e('s_add_u32 s46, s46, s5')
    e(f's_mul_i32 s47, s46, 135168'); e(f's_mov_b32 s48, {PART_OFF}')
    if opts.get('alias', 0): e('s_cmp_ge_u32 s46, 52'); e(f's_mov_b32 s48, {QB_OFF}'); e(f's_cselect_b32 s48, {(HT_OFF - 52*135168) & 0xffffffff}, s48')
    e('s_add_u32 s47, s47, s48'); e('s_mul_i32 s48, s3, 2560'); e('s_add_u32 s52, s47, s48')
    e(f's_mul_i32 s48, s3, 3072'); e('s_add_u32 s47, s47, s48')
    def slot(o, src, sd=50): return f's_add_u32 s{sd}, s{52 if o & 1 else 47}, {(0, 36864, 67584, 104448)[o] + ((src - o - 1) % 4) * 4 * (2560 if o & 1 else 3072)}'
    e(f'v_lshlrev_b32 v{vt+4}, 3, v0')
    e('s_mov_b32 s49, 0xffff0000')
    e('s_waitcnt vmcnt(0)')
    for q in range(1, 4):
        e(f's_cmp_eq_u32 s6, {q}'); e(f's_cbranch_scc1 k2_q{q}')
    h0 = list(e.hist)
    for q in range(4):
        if q: e.label(f'k2_q{q}'); e.hist = list(h0)
        own = list(OWN[q])
        for gs, qq in [(gs, qq) for gs in ((0, 1), (2,)) for qq in (1, 2, 3)]:
            o = (q + qq) % 4
            tl = list(OWN[o]); b = acc + 4 * tl[0]; nv = 4 * len(tl)
            e(slot(o, q))
            for g in gs:
                for p in range(4):
                    j = 7 * g + 2 * p; d = b + 4 * g + p
                    if p < 3 and j < nv: e(f'v_cvt_pk_bf16_f32 v{d}, v{b+j}, v{b+j+1}')
                    elif p == 3 and g < 2: e(f'v_cvt_pk_bf16_f32 v{d}, v{b+j}, v{b+j}'); e(f'v_or_b32 v{d}, s49, v{d}')
                    elif p == 3 or (nv == 16 and p == 1): e(f'v_mov_b32 v{d}, s49')
                if g < 2 or nv == 20: e(f'buffer_store_dwordx4 {vr(b+4*g,4)}, v{vp}, {ws}, s50 offen offset:{g * 1024} sc1')
                else: e(f'buffer_store_dwordx2 {vr(b+8,2)}, v{vt+4}, {ws}, s50 offen offset:2048 sc1')
        stamp(e, 3)
        srcs = [(q + 1 + k) % 4 for k in range(3)]
        n = len(own)
        for k, qq in enumerate(srcs): e(slot(q, qq, 53 + k))
        def poll(part):
            for k in range(3):
                if part == 0:
                    for j in range(2):
                        e(f'buffer_load_dwordx4 {vr(pr + k*12 + 4*j, 4)}, v{vp}, {ws}, s{53+k} offen offset:{j*1024} sc1')
                elif n == 5: e(f'buffer_load_dwordx4 {vr(pr + k*12 + 8, 4)}, v{vp}, {ws}, s{53+k} offen offset:2048 sc1')
                else: e(f'buffer_load_dwordx2 {vr(pr + k*12 + 8, 2)}, v{vt+4}, {ws}, s{53+k} offen offset:2048 sc1')
        tmp = pr + 40
        e(f'v_lshlrev_b32 v{vb2}, 16, v{vb2}')
        for i, t in enumerate(own):
            a = acc + 4 * t
            for h in range(2):
                u = tmp + 4 * (i & 1) + 2 * h
                e(f'v_lshlrev_b32 v{u}, 16, v{xr+2*i+h}'); e(f'v_and_b32 v{u+1}, 0xffff0000, v{xr+2*i+h}')
                e(f'v_pk_add_f32 {vr(a+2*h,2)}, {vr(a+2*h,2)}, {vr(vb2,2)} op_sel_hi:[1,0]')
                e(f'v_pk_add_f32 {vr(a+2*h,2)}, {vr(a+2*h,2)}, {vr(u,2)}')
        e('s_mov_b32 s51, 0x100000')
        lp = f'k2_poll{q}'
        e.label(lp); e.hist = []
        poll(1)
        e('s_sub_u32 s51, s51, 1'); e('s_cmp_eq_u32 s51, 0'); e('s_cbranch_scc1 k2_exit')
        m3 = 11 if n == 5 else 9
        e('s_waitcnt vmcnt(0)')
        e(f'v_min3_u32 v{vt}, v{pr+m3}, v{pr+12+m3}, v{pr+24+m3}')
        e(f'v_cmp_gt_u32 vcc, s49, v{vt}')
        e(f's_cbranch_vccnz {lp}')
        stamp(e, 4)
        poll(0)
        e('s_waitcnt vmcnt(0)')
        e(f'v_min3_u32 v{vt}, v{pr+3}, v{pr+7}, v{pr+15}'); e(f'v_min3_u32 v{vt+1}, v{pr+19}, v{pr+27}, v{pr+31}'); e(f'v_min_u32 v{vt}, v{vt}, v{vt+1}')
        e(f'v_cmp_gt_u32 vcc, s49, v{vt}')
        e(f's_cbranch_vccnz {lp}')
        b = acc + 4 * own[0]
        for i, t in enumerate(own):
            a = acc + 4 * t
            for k in range(3):
                for h in range(2):
                    u = tmp + 4 * (k & 1) + 2 * h
                    for z in range(2):
                        j = 4 * i + 2 * h + z; p = pr + k * 12 + 4 * (j // 7) + (j % 7) // 2
                        if (j % 7) & 1: e(f'v_and_b32 v{u+z}, 0xffff0000, v{p}')
                        else: e(f'v_lshlrev_b32 v{u+z}, 16, v{p}')
                    e(f'v_pk_add_f32 {vr(a+2*h,2)}, {vr(a+2*h,2)}, {vr(u,2)}')
            e(f'v_cvt_pk_bf16_f32 v{a}, v{a}, v{a+1}'); e(f'v_cvt_pk_bf16_f32 v{a+1}, v{a+2}, v{a+3}')
            e(f'buffer_store_dwordx2 {vr(a,2)}, v{vo}, s[{SO}:{SO+3}], s43 offen offset:{i*32}')
        endp(e, 2, SWS)

    e.label('k2_loader'); e.hist = []
    e('s_setprio 3')
    vo_ = 8
    e('v_lshrrev_b32 v1, 4, v0')
    e('s_cmp_ge_u32 s3, 6'); e('s_cbranch_scc1 k2_ldg')
    h0 = list(e.hist)
    for kind in ('w', 'g'):
        n = 8 if kind == 'w' else 9
        if kind == 'w':
            e('v_bfe_u32 v2, v0, 1, 3'); e('v_xor_b32 v2, v2, v1'); e('v_and_b32 v3, 1, v0'); e('v_lshlrev_b32 v3, 4, v3')
            e('v_lshl_add_u32 v3, v1, 12, v3')
            e('v_lshl_add_u32 v5, v2, 5, v3'); e('v_xor_b32 v2, 4, v2'); e('v_lshl_add_u32 v6, v2, 5, v3')
            for i in range(n): e(f'v_add_u32 v{vo_+i}, {4*i*4096 - (i % 4)*1024}, v{5 + ((i >> 1) & 1)}')
            e('s_sub_u32 s41, s3, 4')
            e('s_lshl_b32 s42, s41, 17'); e('s_lshl_b32 s43, s7, 8'); e('s_add_u32 s42, s42, s43')
            e('s_lshl_b32 s43, s39, 18'); e('s_add_u32 s46, s42, s43')
            e(f's_add_u32 s42, s42, {OT_OFF}')
            e('s_lshl_b32 s47, s41, 13')
            step = 64 * 4096; S = SW2
        else:
            e.label('k2_ldg'); e.hist = list(h0)
            e('v_lshrrev_b32 v3, 3, v0'); e(f'v_mul_u32_u24 v3, {GE_LD}, v3'); e('v_and_b32 v4, 7, v0'); e('v_xor_b32 v4, v4, v1')
            e('s_sub_u32 s41, s3, 6'); e('s_lshl_b32 s43, s41, 2'); e('v_xor_b32 v4, s43, v4')
            e('v_lshl_add_u32 v5, v4, 4, v3'); e('v_xor_b32 v4, 4, v4'); e('v_lshl_add_u32 v6, v4, 4, v3')
            for i in range(n): e(f'v_add_u32 v{vo_+i}, {8*i*GE_LD - (i % 4)*1024}, v{5 + (i & 1)}')
            e(f's_mul_i32 s46, s5, {144*GE_LD}'); e(f's_mul_i32 s43, s41, {72*GE_LD}'); e('s_add_u32 s46, s46, s43')
            e('s_lshl_b32 s43, s39, 7'); e('s_add_u32 s46, s46, s43'); e(f's_add_u32 s46, s46, {GE_OFF}')
            e('s_mul_i32 s47, s41, 9216'); e('s_add_u32 s47, s47, 16384')
            step = 128; S = SWS
            if opts.get('xc', 0):
                e('v_lshlrev_b32 v7, 4, v0')
                for i in range(n): e(f'v_add_u32 v{vo_+i}, {(i - i % 4)*1024}, v7')
                e('s_mul_i32 s46, s5, 81'); e('s_add_u32 s46, s46, s39'); e('s_mul_i32 s46, s46, 18432'); e('s_mul_i32 s43, s41, 9216'); e('s_add_u32 s46, s46, s43')
                e(f's_add_u32 s46, s46, {GE_OFF}'); step = 18432
        if opts.get('xs', 0): step = 0
        e(f's_add_u32 s48, s47, {D*K2_SLOT}')
        e('s_mov_b32 s44, s47')
        e('s_mov_b32 s49, s39')
        def issue():
            if kind == 'w':
                l = e.newlabel('k2sw')
                e('s_cmp_lg_u32 s49, 72'); e(f's_cbranch_scc1 {l}')
                srd(e, SW2, 30, WS_USED); e('s_mov_b32 s46, s42')
                e.label(l)
                e('s_add_u32 s49, s49, 1')
            for i in range(n if X != 1 else 0):
                if i % 4 == 0: e(f's_add_u32 m0, s44, {i*1024}')
                e(f'buffer_load_dwordx4 v{vo_+i}, s[{S}:{S+3}], s46 offen offset:{(i%4)*1024} lds')
            e(f's_add_u32 s46, s46, {step}')
            e(f's_add_u32 s44, s44, {K2_SLOT}'); e('s_cmp_ge_u32 s44, s48'); e('s_cselect_b32 s44, s47, s44')
        issue(); issue()
        e(f's_waitcnt vmcnt({n})'); e('s_barrier')
        for _ in range(D - 2): issue()
        e(f's_sub_u32 s45, s40, {D}')
        lq = f'k2_lq{kind}'
        e.label(lq); e.hist = []
        e(f's_waitcnt vmcnt({n*(D-2)})'); e('s_barrier')
        issue()
        e('s_sub_u32 s45, s45, 1'); e('s_cmp_lg_u32 s45, 0'); e(f's_cbranch_scc1 {lq}')
        for r in range(D - 2, -1, -1):
            e(f's_waitcnt vmcnt({n*r})'); e('s_barrier')
        endp(e, 2, SWS)
    e.label('k2_exit')
    e('s_endpgm')
    return name, 256, D * K2_SLOT
```

```python
import sys, math
from asmlib import Emit, Alloc, vr, sr, f2u

NAME = 'parallel_sum__sliding_block__mixer_token_mlp__prompt'
HT_OFF, HT_LD = 0x1000, 4224
GE_OFF, GE_LD = 0x260000, 10368
OT_OFF = 0x820000
QB_OFF = 0xA60000
KB_OFF = 0xCA0000
X2_REL = 0x200000
VT_OFF, VT_LD = 0xEE0000, 577 * 32
PART_OFF = 0x1130000
FLAG_OFF = 0x2330000
DBG_OFF = 0x2340000
WS_USED = 0x2340000 + 3 * 0x20000
DBG = [0]
X_BYTES = 2048 * 576 * 2
WQKV_BYTES = 576 * 1728 * 2
WO_BYTES = 576 * 576 * 2
W1_BYTES = 2048 * 4608 * 2
ONES = 0x3F803F80

def srd(e, d, lo, nbytes):
    e(f's_mov_b32 s{d}, s{lo}')
    e(f's_and_b32 s{d+1}, s{lo+1}, 0xffff')
    e(f's_mov_b32 s{d+2}, {nbytes}')
    e(f's_mov_b32 s{d+3}, 0x20000')

def header(e, name):
    e('.p2align 8'); e(f'.globl {name}'); e(f'.type {name},@function'); e(f'{name}:')
    e.hist = []

def stamp(e, i):
    if DBG[0]: e(f's_memtime s[{80+2*i}:{81+2*i}]')
def dstart(e):
    if DBG[0]:
        e('s_memrealtime s[92:93]')
        for i in range(6): stamp(e, i)
def endp(e, kidx, sws):
    if DBG[0]:
        stamp(e, 5)
        e('s_memrealtime s[94:95]')
        e('s_waitcnt lgkmcnt(0)')
        for i, s in enumerate((92, 94, 80, 82, 84, 86, 88, 90)): e(f'v_mov_b32 v{4+i}, s{s}')
        e('s_lshl_b32 s80, s2, 3'); e('s_add_u32 s80, s80, s3'); e('s_lshl_b32 s80, s80, 6'); e(f's_add_u32 s80, s80, {DBG_OFF + kidx*0x20000}')
        e('v_mov_b32 v2, 0')
        e(f'buffer_store_dwordx4 v[4:7], v2, s[{sws}:{sws+3}], s80 offen')
        e(f'buffer_store_dwordx4 v[8:11], v2, s[{sws}:{sws+3}], s80 offen offset:16')
    e('s_endpgm')

OPT = {}
def pf_w1_setup(e, vtmp, sa, sb, sw):
    e(f's_mul_i32 s{sa}, s4, 9'); e(f's_lshr_b32 s{sa}, s{sa}, 1'); e(f's_lshl_b32 s{sa}, s{sa}, 8')
    e(f's_mul_i32 s{sb}, s5, {64*9216}'); e(f's_add_u32 s{sa}, s{sa}, s{sb}')
    e(f's_lshl_b32 s{sb}, s{sw}, 7'); e(f's_add_u32 s{sa}, s{sa}, s{sb}')
    e(f'v_mul_u32_u24 v{vtmp}, 9216, v0')
def pf_w1(e, SP, vtmp, vdst, sa, line):
    if not OPT.get('pf', 1): return 0
    e(f'buffer_load_dword v{vdst}, v{vtmp}, s[{SP}:{SP+3}], s{sa} offen offset:{line*128}')
    return 1

def descriptor(name, nv, ns=102):
    acc = (nv + 3) // 4 * 4
    return f'''.p2align 6
.amdhsa_kernel {name}
  .amdhsa_next_free_vgpr {nv}
  .amdhsa_next_free_sgpr {ns}
  .amdhsa_accum_offset {acc}
  .amdhsa_group_segment_fixed_size 0
  .amdhsa_kernarg_size 88
  .amdhsa_user_sgpr_count 2
  .amdhsa_user_sgpr_kernarg_segment_ptr 1
  .amdhsa_system_sgpr_workgroup_id_x 1
.end_amdhsa_kernel
'''

def rbf(e, v):
    e(f'v_cvt_pk_bf16_f32 v{v}, v{v}, v{v}')
    e(f'v_lshlrev_b32 v{v}, 16, v{v}')

def ln_scalars(e, mean, var, tmp):
    rbf(e, mean)
    rbf(e, var)
    e(f'v_add_f32 v{var}, {hex(f2u(1e-5))}, v{var}')
    rbf(e, var)
    e(f'v_sqrt_f32 v{var}, v{var}')
    rbf(e, var)
    e(f'v_rcp_f32 v{var}, v{var}')

K0_SLOT = 40960
K0_D = 3
K0_CS = 0
K0_ST = K0_CS + 1024
K0_LDS = K0_D * K0_SLOT
def q_first(e, sd, sx, st):
    e(f's_lshr_b32 s{st}, s{sx}, 1'); e(f's_mul_i32 s{sd}, s{st}, 20'); e(f's_cmp_lg_u32 s{st}, 0'); e(f's_addc_u32 s{sd}, s{sd}, 0')
    e(f's_lshl_b32 s{sd}, s{sd}, 18'); e(f's_and_b32 s{st}, s{sx}, 1'); e(f's_lshl_b32 s{st}, s{st}, 11'); e(f's_add_u32 s{sd}, s{sd}, s{st}')
def zfill(e, sz, vz, va, sws):
    ZF = {0: '', 1: ' sc1', 2: ' sc0 sc1', 3: ' nt'}[OPT.get('zf', 1)]
    e(f's_mul_i32 s{sz}, s{sz}, 10240'); e(f's_add_u32 s{sz}, s{sz}, {PART_OFF}')
    e(f'v_lshlrev_b32 v{va}, 4, v0')
    for i in range(10):
        e(f'buffer_store_dwordx4 {vr(vz,4)}, v{va}, s[{sws}:{sws+3}], s{sz} offen offset:{(i%4)*1024}{ZF}')
        if i % 4 == 3: e(f's_add_u32 s{sz}, s{sz}, 4096')
def w1_lane(e, v, t):
    e(f'v_mul_u32_u24 v{v}, 26, v0'); e(f'v_lshrrev_b32 v{v}, 8, v{v}'); e(f'v_mul_u32_u24 v{t}, 10, v{v}'); e(f'v_sub_u32 v{t}, v0, v{t}')
    e(f'v_mul_u32_u24 v{v}, 9216, v{v}'); e(f'v_lshl_add_u32 v{v}, v{t}, 7, v{v}')
    e(f'v_mov_b32 v{t}, 0x40000000'); e('v_cmp_gt_u32 vcc, 60, v0'); e(f'v_cndmask_b32 v{v}, v{t}, v{v}, vcc')

def gen_k0(e):
    name = 'k0_ln_qkv_kernel'
    header(e, name)
    SX, SW, SWS, SWO = 8, 12, 16, 20
    D = K0_D
    e('s_cmp_ge_u32 s2, 256'); e('s_cbranch_scc1 k0_exit')
    dstart(e)
    e('s_load_dwordx4 s[24:27], s[0:1], 0')
    e('s_load_dwordx2 s[28:29], s[0:1], 16')
    e('s_load_dwordx2 s[30:31], s[0:1], 80')
    e('s_load_dwordx2 s[44:45], s[0:1], 32')
    e('v_lshrrev_b32 v1, 6, v0')
    e('v_and_b32 v0, 63, v0')
    e('v_readfirstlane_b32 s3, v1')
    e('s_and_b32 s4, s2, 7')
    e('s_lshr_b32 s5, s2, 3')
    e('s_lshl_b32 s6, s4, 1'); e('s_and_b32 s7, s5, 1'); e('s_add_u32 s6, s6, s7')
    e('s_lshr_b32 s7, s5, 1')
    e('s_waitcnt lgkmcnt(0)')
    srd(e, SX, 24, X_BYTES); srd(e, SW, 26, WQKV_BYTES); srd(e, SWO, 28, WO_BYTES); srd(e, SWS, 30, WS_USED); srd(e, 48, 44, (2304 - 128 * OPT.get('fw1', 3)) * 8192)
    e('s_cmp_ge_u32 s5, 26'); e('s_cbranch_scc1 k0_pf')
    e('s_cmp_ge_u32 s5, 18'); e('s_cbranch_scc1 k0_ln')
    e('s_cmp_ge_u32 s3, 4'); e('s_cbranch_scc1 k0_loader')

    def wbase(d0, t):
        e(f'v_lshrrev_b32 v{t}, 4, v0'); e(f'v_bfe_u32 v{t+1}, v0, 2, 2'); e(f'v_lshl_add_u32 v{t+2}, v{t}, 3, v{t+1}')
        e(f'v_mul_u32_u24 v{t+2}, 384, v{t+2}'); e(f'v_and_b32 v{t+3}, 3, v0'); e(f'v_lshl_add_u32 v{t+2}, v{t+3}, 3, v{t+2}')
        e(f'v_lshrrev_b32 v{t+1}, 1, v{t+1}'); e(f'v_and_b32 v{t}, 1, v{t}'); e(f'v_lshl_add_u32 v{t+1}, v{t}, 1, v{t+1}')
    e('s_setprio 2')
    A = Alloc('v', 1, 256)
    vw0 = A.get(4); vw = A.get(4); vx0 = A.get(2); vx = A.get(2)
    vt = A.get(6)
    st = A.get(4, 2); sa = A.get(16, 4); on = A.get(4, 4)
    vad = A.get(24)
    acc = A.get(96, 4); cs = A.get(56, 4); wr = cs + 16; xr = cs + 40
    wbase(vw0, cs)
    for n in range(4):
        e(f'v_xor_b32 v{cs}, {n}, v{cs+1}'); e(f'v_lshl_add_u32 v{vw0+n}, v{cs}, 5, v{cs+2}')
    e('s_lshl_b32 s32, s6, 7'); e('s_lshl_b32 s33, s3, 5'); e('s_add_u32 s32, s32, s33')
    e(f'v_and_b32 v{vt}, 15, v0')
    e(f'v_lshrrev_b32 v{vt+1}, 4, v0')
    e(f'v_add_u32 v{vt+2}, s32, v{vt}')
    e(f'v_lshrrev_b32 v{vt+3}, 1, v{vt}'); e(f'v_xor_b32 v{vt+3}, v{vt+3}, v{vt+1}')
    e(f'v_add_u32 v{vt+4}, s33, v{vt}'); e(f'v_lshlrev_b32 v{vt+4}, 7, v{vt+4}')
    e(f'v_lshl_add_u32 v{vx0}, v{vt+3}, 4, v{vt+4}')
    e(f'v_xor_b32 v{vt+3}, 4, v{vt+3}'); e(f'v_lshl_add_u32 v{vx0+1}, v{vt+3}, 4, v{vt+4}')
    for i in range(4): e(f'v_mov_b32 v{vw+i}, v{vw0+i}'); e(f'v_mov_b32 v{on+i}, {hex(ONES)}')
    for i in range(2): e(f'v_mov_b32 v{vx+i}, v{vx0+i}')
    for i in range(16): e(f'v_mov_b32 v{sa+i}, 0')
    e('s_mul_i32 s35, s7, 86'); e('s_lshr_b32 s35, s35, 8'); e('s_mul_i32 s34, s35, 3'); e('s_sub_u32 s35, s7, s34')
    e('s_mov_b32 s44, 0')
    e('s_cmp_ge_u32 s7, 6'); e('s_cbranch_scc1 k0_cv')
    hist0 = list(e.hist)

    for variant in ('qk', 'v'):
        if variant == 'v':
            e.label('k0_cv'); e.hist = list(hist0)
            e('s_lshr_b32 s36, s32, 5'); e(f's_mul_i32 s36, s36, {2*VT_LD}'); e(f's_add_u32 s36, s36, {VT_OFF}')
            e(f's_mul_i32 s37, s35, {192*32}'); e('s_add_u32 s36, s36, s37')
            e(f'v_lshlrev_b32 v{vad}, 5, v{vt}')
            e(f'v_and_b32 v{vt+4}, 1, v{vt+1}')
            e(f'v_lshl_add_u32 v{vad}, v{vt+4}, 4, v{vad}')
            e(f'v_lshrrev_b32 v{vt+4}, 1, v{vt+1}')
            e(f'v_lshl_add_u32 v{vad}, v{vt+4}, 3, v{vad}')
            e(f'v_add_u32 v{vad}, s36, v{vad}')
        else:
            e(f's_mov_b32 s36, {QB_OFF}'); e(f's_mov_b32 s37, {KB_OFF}')
            e('s_cmp_ge_u32 s7, 3'); e('s_cselect_b32 s36, s37, s36')
            e('s_mul_i32 s37, s35, 48')
            e(f'v_lshlrev_b32 v{vt+3}, 5, v{vt+2}')
            e(f'v_lshlrev_b32 v{vt+4}, 3, v{vt+2}')
            e(f'v_add_u32 v{vt+5}, s37, v{vt+1}')
            t0, t1, t2 = cs, cs + 1, cs + 2
            for nt in range(12):
                e(f'v_add_u32 v{t0}, {4*nt}, v{vt+5}')
                e(f'v_mul_u32_u24 v{t1}, 57, v{t0}')
                e(f'v_lshrrev_b32 v{t1}, 9, v{t1}')
                e(f'v_mul_u32_u24 v{t2}, 9, v{t1}')
                e(f'v_sub_u32 v{t0}, v{t0}, v{t2}')
                e(f'v_cmp_lt_u32 vcc, 4, v{t0}')
                e(f'v_lshlrev_b32 v{t2}, 17, v{t1}')
                e(f'v_lshl_add_u32 v{t2}, v{t0}, 3, v{t2}')
                e(f'v_add_u32 v{t2}, v{t2}, v{vt+3}')
                e(f'v_add_u32 v{vad+nt}, {65536-40}, v{t2}')
                e(f'v_cndmask_b32 v{t2}, v{t2}, v{vad+nt}, vcc')
                e(f'v_cmp_eq_u32 vcc, 4, v{t0}')
                e(f'v_lshlrev_b32 v{t1}, 14, v{t1}')
                e(f'v_add_u32 v{t1}, {X2_REL}, v{t1}')
                e(f'v_add_u32 v{t1}, v{t1}, v{vt+4}')
                e(f'v_cndmask_b32 v{vad+nt}, v{t2}, v{t1}, vcc')
                e(f'v_mov_b32 v{t0}, 512')
                e(f'v_mov_b32 v{t1}, 128')
                e(f'v_cndmask_b32 v{t0}, v{t0}, v{t1}, vcc')
                e(f'v_add_u32 v{vad+12+nt}, v{vad+nt}, v{t0}')
        for i in range(96): e(f'v_mov_b32 v{acc+i}, 0')
        lg = []
        def rd(u):
            kk, nt = divmod(u, 12)
            if nt == 0:
                for rt in range(2):
                    e(f'ds_read_b128 {vr(xr + kk*8 + rt*4, 4)}, v{vx+kk} offset:{24576 + rt*2048}'); lg.append('x')
            d = wr + (u % 6) * 4
            for j in range(2):
                e(f'ds_read_b64_tr_b16 {vr(d+2*j,2)}, v{vw+(nt&3)} offset:{kk*12288 + j*1536 + (nt>>2)*128}'); lg.append(u)
        def waitfor(u):
            idx = [i for i, t in enumerate(lg) if t == u]
            if not idx: return
            e(f's_waitcnt lgkmcnt({len(lg) - 1 - idx[-1]})'); del lg[:idx[-1] + 1]
        def stage(last):
            for u in range(24):
                kk, nt = divmod(u, 12)
                if u == 20: e('s_waitcnt lgkmcnt(0)'); lg.clear()
                else: waitfor(u)
                w = vr(wr + (u % 6) * 4, 4)
                for rt in range(2):
                    a = vr(acc + (nt * 2 + rt) * 4, 4); x = vr(xr + kk * 8 + rt * 4, 4)
                    if variant == 'qk': e(f'v_mfma_f32_16x16x32_bf16 {a}, {w}, {x}, {a}')
                    else: e(f'v_mfma_f32_16x16x32_bf16 {a}, {x}, {w}, {a}')
                    if rt == 0:
                        if u == 20 and not last:
                            e(f's_add_u32 s44, s44, {K0_SLOT}'); e(f's_cmp_ge_u32 s44, {D*K0_SLOT}'); e('s_cselect_b32 s44, 0, s44')
                            e('s_barrier')
                            for i in range(4): e(f'v_add_u32 v{vw+i}, s44, v{vw0+i}')
                            for i in range(2): e(f'v_add_u32 v{vx+i}, s44, v{vx0+i}')
                        if u <= 18: rd(u + 4)
                        elif u >= 20 and not last: rd(u - 20)
                    elif u == 18: rd(23)
                if 2 <= nt < 6:
                    k = nt - 2
                    a = vr(sa + k * 4, 4); x = vr(xr + kk * 8 + (k & 1) * 4, 4)
                    e(f'v_mfma_f32_16x16x32_bf16 {a}, {vr(on,4) if k < 2 else x}, {x}, {a}')
        if OPT.get('pfw', 0):
            l = e.newlabel('k0pw')
            e('s_cmp_eq_u32 s3, 3'); e(f's_cbranch_scc1 {l}')
            e('s_mul_i32 s46, s5, 3'); e('s_add_u32 s46, s46, s3');
            e('s_lshl_b32 s46, s46, 13'); e(f's_add_u32 s46, s46, {OPT.get("k0i", 2)*64*3456}')
            e('v_lshlrev_b32 v250, 7, v0')
            for r in range(3 if OPT.get('k0i', 2) == 3 else 4):
                e(f'buffer_load_dword v251, v250, s[{SW}:{SW+3}], s46 offen'); e(f's_add_u32 s46, s46, {128*3456}')
            e.label(l)
        stamp(e, 1)
        e('s_barrier')
        stamp(e, 2)
        for u in range(4): rd(u)
        lg0 = list(lg)
        e('s_mov_b32 s45, 8')
        lp = f'k0_loop_{variant}'
        e.label(lp); e.hist = []
        stage(False)
        assert lg == lg0
        e('s_sub_u32 s45, s45, 1'); e('s_cmp_lg_u32 s45, 0'); e(f's_cbranch_scc1 {lp}')
        stage(True)
        stamp(e, 3)
        e(f'v_and_b32 v{vt+3}, 3, v0')
        e(f'v_lshrrev_b32 v{vt+4}, 2, v{vt}'); e(f'v_lshl_add_u32 v{vt+4}, v{vt+4}, 4, v{vt}'); e(f'v_lshlrev_b32 v{vt+4}, 2, v{vt+4}')
        for r in range(1, 4): e(f'v_cmp_eq_u32 s[{50+2*r}:{51+2*r}], {r}, v{vt+3}')
        for rt in range(2):
            q = sa + 8 + rt * 4
            for r in range(1, 4): e(f'v_cndmask_b32 v{q}, v{q}, v{q+r}, s[{50+2*r}:{51+2*r}]')
            e(f'ds_bpermute_b32 v{st+2+rt}, v{vt+4}, v{q}')
            e(f'v_mov_b32 v{st+rt}, v{sa+rt*4}')
        e('s_waitcnt lgkmcnt(0)')
        inv = hex(f2u(1.0 / 576))
        for rt in range(2):
            e(f'v_mul_f32 v{st+rt}, {inv}, v{st+rt}')
            e(f'v_mul_f32 v{st+2+rt}, {inv}, v{st+2+rt}')
            e(f'v_fma_f32 v{st+2+rt}, -v{st+rt}, v{st+rt}, v{st+2+rt}')
            e(f'v_max_f32 v{st+2+rt}, 0, v{st+2+rt}')
            ln_scalars(e, st + rt, st + 2 + rt, vt + 3)
        e('s_barrier')
        stamp(e, 4)
        if variant == 'qk':
            e(f'v_lshlrev_b32 v{vt+3}, 4, v{vt+1}')
            e(f'v_add_u32 v{vt+3}, {K0_CS}, v{vt+3}')
            for nt in range(12):
                e(f'ds_read_b128 {vr(cs+nt*4,4)}, v{vt+3} offset:{nt*64}')
            mm = cs + 48
            for rt in range(2):
                e(f'v_sub_f32 v{mm+rt*4}, 0, v{st+rt}')
                e(f'v_mov_b32 v{mm+rt*4+2}, v{st+2+rt}')
            for nt in range(12):
                e(f's_waitcnt lgkmcnt({11-nt})')
                for rt in range(2):
                    a = acc + (nt * 2 + rt) * 4
                    for h in range(2):
                        e(f'v_pk_fma_f32 {vr(a+2*h,2)}, {vr(cs+nt*4+2*h,2)}, {vr(mm+rt*4,2)}, {vr(a+2*h,2)} op_sel_hi:[1,0,1]')
                    for h in range(2):
                        e(f'v_pk_mul_f32 {vr(a+2*h,2)}, {vr(a+2*h,2)}, {vr(mm+rt*4+2,2)} op_sel_hi:[1,0]')
                    e(f'v_cvt_pk_bf16_f32 v{a}, v{a}, v{a+1}')
                    e(f'v_cvt_pk_bf16_f32 v{a+1}, v{a+2}, v{a+3}')
                    e(f'buffer_store_dwordx2 {vr(a,2)}, v{vad+rt*12+nt}, s[{SWS}:{SWS+3}], s36 offen{" sc1" if OPT.get("wt0", 0) & 1 else ""}')
        else:
            e(f's_lshl_b32 s37, s3, 8'); e(f's_add_u32 s37, s37, {K0_ST}')
            e(f'v_lshlrev_b32 v{vt+3}, 2, v{vt}')
            e(f'v_add_u32 v{vt+3}, s37, v{vt+3}')
            for rt in range(2):
                e(f'v_sub_f32 v{st+rt}, 0, v{st+rt}')
                e(f'ds_write_b32 v{vt+3}, v{st+rt} offset:{rt*64}')
                e(f'ds_write_b32 v{vt+3}, v{st+2+rt} offset:{128+rt*64}')
            e(f'v_lshlrev_b32 v{vt+4}, 4, v{vt+1}')
            e(f'v_add_u32 v{vt+4}, s37, v{vt+4}')
            e(f'v_lshlrev_b32 v{vt+3}, 2, v{vt}')
            e(f'v_add_u32 v{vt+3}, {K0_CS}, v{vt+3}')
            e('s_waitcnt lgkmcnt(0)')
            mm = cs + 24
            for rt in range(2):
                e(f'ds_read_b128 {vr(mm+rt*4,4)}, v{vt+4} offset:{rt*64}')
                e(f'ds_read_b128 {vr(mm+8+rt*4,4)}, v{vt+4} offset:{128+rt*64}')
            e('s_waitcnt lgkmcnt(0)')
            for nt in range(12):
                e(f'ds_read_b32 v{cs+2*nt}, v{vt+3} offset:{nt*64}')
            e(f's_mov_b32 s38, {VT_LD}'); e(f's_mov_b32 s39, 4096'); e(f's_mov_b32 s40, {VT_LD+4096}')
            for nt in range(12):
                e(f's_waitcnt lgkmcnt({11-nt})')
                for rt in range(2):
                    a = acc + (nt * 2 + rt) * 4
                    for h in range(2):
                        e(f'v_pk_fma_f32 {vr(a+2*h,2)}, {vr(mm+rt*4+2*h,2)}, {vr(cs+2*nt,2)}, {vr(a+2*h,2)} op_sel_hi:[1,0,1]')
                    for h in range(2):
                        e(f'v_pk_mul_f32 {vr(a+2*h,2)}, {vr(a+2*h,2)}, {vr(mm+8+rt*4+2*h,2)}')
                    e(f'v_cvt_pk_bf16_f32 v{a}, v{a}, v{a+1}')
                    e(f'v_cvt_pk_bf16_f32 v{a+1}, v{a+2}, v{a+3}')
                    so = {(0, 0): '0', (1, 0): 's38', (0, 1): 's39', (1, 1): 's40'}[(rt, nt // 8)]
                    e(f'buffer_store_dwordx2 {vr(a,2)}, v{vad}, s[{SWS}:{SWS+3}], {so} offen offset:{(nt%8)*512}{" sc1" if OPT.get("wt0", 0) & 1 else ""}')
        endp(e, 0, SWS)

    e.label('k0_loader'); e.hist = []
    e('s_setprio 3')
    e('s_sub_u32 s33, s3, 4')
    vo = 8
    e('v_lshrrev_b32 v1, 4, v0'); e('v_lshrrev_b32 v3, 3, v0'); e('v_mul_u32_u24 v3, 1152, v3'); e('v_and_b32 v4, 7, v0'); e('v_xor_b32 v4, v4, v1')
    e('v_lshl_add_u32 v5, v4, 4, v3'); e('v_xor_b32 v4, 4, v4'); e('v_lshl_add_u32 v6, v4, 4, v3')
    for i in range(4): e(f'v_add_u32 v{vo+6+i}, {8*i*1152 - i*1024}, v{5 + (i & 1)}')
    for n in range(6):
        e(f'v_add_u32 v1, {64*n}, v0')
        e('v_mul_u32_u24 v2, 2731, v1'); e('v_lshrrev_b32 v2, 16, v2')
        e('v_mul_u32_u24 v3, 24, v2'); e('v_sub_u32 v3, v1, v3')
        e('v_bfe_u32 v4, v2, 1, 1'); e('v_bfe_u32 v5, v2, 3, 1'); e('v_lshl_add_u32 v4, v5, 1, v4')
        e('v_lshlrev_b32 v4, 1, v4'); e('v_xor_b32 v3, v3, v4')
        e('v_mul_u32_u24 v2, 3456, v2'); e('v_lshl_add_u32 v2, v3, 4, v2')
        e(f'v_subrev_u32 v{vo+n}, {(n % 4) * 1024}, v2')
    e(f's_mul_i32 s36, s7, 384'); e(f's_mul_i32 s37, s33, {16*3456}'); e('s_add_u32 s36, s36, s37')
    e('s_lshl_b32 s37, s6, 7'); e('s_lshl_b32 s38, s33, 5'); e('s_add_u32 s37, s37, s38'); e('s_mul_i32 s37, s37, 1152')
    e('s_mul_i32 s38, s33, 6144'); e('s_lshl_b32 s39, s33, 12'); e('s_add_u32 s39, s39, 24576')
    def issue(stage):
        o = (stage % D) * K0_SLOT
        e(f's_add_u32 m0, s39, {o}')
        for i in range(4): e(f'buffer_load_dwordx4 v{vo+6+i}, s[{SX}:{SX+3}], s37 offen offset:{i*1024} lds')
        for n in range(6):
            if n % 4 == 0: e(f's_add_u32 m0, s38, {o + n*1024}')
            e(f'buffer_load_dwordx4 v{vo+n}, s[{SW}:{SW+3}], s36 offen offset:{(n%4)*1024} lds')
        e(f's_add_u32 s36, s36, {64*3456}'); e('s_add_u32 s37, s37, 128')
    for s_ in range(OPT.get('k0i', 2)): issue(s_)
    wbase(0, 40)
    e('v_xor_b32 v40, s33, v41'); e('v_lshl_add_u32 v20, v40, 5, v42')
    for s_ in range(1, D): e(f'v_add_u32 v{20+s_}, {s_*K0_SLOT}, v20')
    for i in range(4): e(f'v_mov_b32 v{24+i}, {hex(ONES)}')
    for i in range(12): e(f'v_mov_b32 v{28+i}, 0')
    stamp(e, 1)
    issued = OPT.get('k0i', 2)
    for j in range(9):
        e(f's_waitcnt vmcnt({10*(issued-1-j)})')
        e('s_barrier')
        if j == 0:
            while issued < D: issue(issued); issued += 1
        elif issued < 9: issue(issued); issued += 1
        if j in (0, 4, 8): stamp(e, 2 + j // 4)
        for kk in range(2):
            for ti in range(3):
                d = 40 + (kk * 3 + ti) * 4
                for jj in range(2): e(f'ds_read_b64_tr_b16 {vr(d+2*jj,2)}, v{20 + j % D} offset:{kk*12288 + jj*1536 + ti*128}')
        e('s_waitcnt lgkmcnt(0)')
        for kk in range(2):
            for ti in range(3):
                e(f'v_mfma_f32_16x16x32_bf16 {vr(28+ti*4,4)}, v[24:27], {vr(40 + (kk*3+ti)*4,4)}, {vr(28+ti*4,4)}')
    e('v_and_b32 v1, 15, v0'); e('v_lshlrev_b32 v1, 2, v1'); e('s_lshl_b32 s38, s33, 6'); e(f's_add_u32 s38, s38, {K0_CS}')
    e('v_add_u32 v1, s38, v1')
    for ti in range(3): e(f'ds_write_b32 v1, v{28+ti*4} offset:{ti*256}')
    e('s_waitcnt lgkmcnt(0)')
    e('s_barrier')
    endp(e, 0, SWS)

    e.label('k0_pf'); e.hist = []
    e('s_mul_i32 s46, s4, 6'); e('s_add_u32 s46, s46, s5'); e('s_sub_u32 s46, s46, 26'); e('s_lshl_b32 s46, s46, 3'); e('s_add_u32 s46, s46, s3')
    e('v_lshlrev_b32 v1, 7, v0')
    e('s_lshl_b32 s47, s46, 13')
    e('s_cmp_ge_u32 s46, 243'); e(f's_cselect_b32 s46, {243*8192}, 0'); e('s_sub_u32 s46, s47, s46')
    e(f'buffer_load_dword v3, v1, s[{SW}:{SW+3}], s46 offen')
    e(f's_mov_b32 s46, {OPT.get("pfn", 4)*384*8192}')
    e('s_waitcnt vmcnt(0)')
    e.label('k0_pf2')
    e('buffer_load_dword v3, v1, s[48:51], s47 offen'); e(f's_add_u32 s47, s47, {384*8192}')
    e('s_cmp_lt_u32 s47, s46'); e('s_cbranch_scc1 k0_pf2')
    stamp(e, 1)
    e('s_waitcnt vmcnt(0)')
    endp(e, 0, SWS)

    e.label('k0_ln'); e.hist = []
    LD = 1184
    e('s_lshl_b32 s6, s4, 3'); e('s_add_u32 s6, s6, s5'); e('s_sub_u32 s6, s6, 18')
    e('v_lshrrev_b32 v1, 4, v0'); e('v_and_b32 v2, 15, v0')
    e('s_lshl_b32 s7, s3, 2'); e('v_add_u32 v3, s7, v1')
    e('v_mul_u32_u24 v4, 1152, v3'); e('v_lshl_add_u32 v4, v2, 3, v4')
    e(f'v_mul_u32_u24 v5, {LD}, v3'); e('v_lshl_add_u32 v5, v2, 3, v5')
    e(f's_mul_i32 s32, s6, {32*1152}')
    xp, wp, xf = 16, 34, 52
    e('v_mov_b32 v8, 0'); e('v_mov_b32 v9, 0'); e('v_mov_b32 v10, 0'); e('v_mov_b32 v11, 0')
    e('v_lshrrev_b32 v6, 3, v0'); e(f'v_mul_u32_u24 v6, {HT_LD}, v6'); e('v_and_b32 v7, 7, v0'); e('v_lshl_add_u32 v6, v7, 4, v6')
    e('s_lshr_b32 s34, s3, 1'); e('s_mul_i32 s33, s6, 9'); e('s_add_u32 s33, s33, s34'); e(f's_mul_i32 s33, s33, {HT_LD}'); e(f's_add_u32 s33, s33, {HT_OFF + 4096}')
    e('s_and_b32 s34, s3, 5'); e('s_cmp_eq_u32 s34, 0'); e('s_cbranch_scc0 k0_ln_nf')
    e(f'buffer_store_dwordx4 v[8:11], v6, s[{SWS}:{SWS+3}], s33 offen')
    e.label('k0_ln_nf')
    for i in range(4): e(f'v_mov_b32 v{12+i}, {hex(ONES)}')
    e('v_bfe_u32 v6, v0, 1, 1'); e(f'v_mul_u32_u24 v6, {VT_LD}, v6'); e('v_and_b32 v7, 1, v0'); e('v_lshl_add_u32 v6, v7, 4, v6')
    e(f's_mul_i32 s33, s6, {2*VT_LD}'); e(f's_add_u32 s33, s33, {VT_OFF + 576*32}')
    e('s_cmp_eq_u32 s3, 1'); e('s_cbranch_scc0 k0_ln_no')
    e(f'buffer_store_dwordx4 v[12:15], v6, s[{SWS}:{SWS+3}], s33 offen')
    e.label('k0_ln_no')
    for c in range(9):
        e(f'buffer_load_dwordx2 {vr(xp+2*c,2)}, v4, s[{SX}:{SX+3}], s32 offen offset:{c*128}')
    for c in range(9):
        e(f'buffer_load_dwordx2 {vr(wp+2*c,2)}, v4, s[{SWO}:{SWO+3}], s32 offen offset:{c*128}')
    npf = OPT.get('pfln', 1)
    e('s_lshl_b32 s46, s6, 3'); e('s_add_u32 s46, s46, s3'); e(f's_add_u32 s46, s46, {OPT.get("pfn", 4)*384}'); e('s_lshl_b32 s46, s46, 13')
    e('v_lshlrev_b32 v92, 7, v0')
    e('s_waitcnt vmcnt(9)')
    for i in range(npf):
        e('buffer_load_dword v93, v92, s[48:51], s46 offen'); e(f's_add_u32 s46, s46, {512*8192}')
    stamp(e, 1)
    def unpack():
        for i in range(18):
            e(f'v_lshlrev_b32 v{xf+2*i}, 16, v{xp+i}')
            e(f'v_and_b32 v{xf+2*i+1}, 0xffff0000, v{xp+i}')
    def allred(v):
        for m in ('quad_perm:[1,0,3,2]', 'quad_perm:[2,3,0,1]', 'row_half_mirror', 'row_mirror'):
            e(f'v_add_f32_dpp v{v}, v{v}, v{v} {m} row_mask:0xf bank_mask:0xf')
    inv = hex(f2u(1.0 / 576))
    for rep in range(2):
        unpack()
        e(f'v_pk_add_f32 v[8:9], {vr(xf,2)}, {vr(xf+2,2)}')
        e(f'v_pk_add_f32 v[10:11], {vr(xf+4,2)}, {vr(xf+6,2)}')
        for i in range(4, 18):
            t = 8 + 2 * (i & 1)
            e(f'v_pk_add_f32 {vr(t,2)}, {vr(t,2)}, {vr(xf+2*i,2)}')
        e('v_pk_add_f32 v[8:9], v[8:9], v[10:11]')
        e('v_add_f32 v8, v8, v9')
        allred(8)
        e(f'v_mul_f32 v12, {inv}, v8')
        e('v_sub_f32 v14, 0, v12')
        e('v_mov_b32 v8, 0'); e('v_mov_b32 v9, 0'); e('v_mov_b32 v10, 0'); e('v_mov_b32 v11, 0')
        for i in range(18):
            t = 8 + 2 * (i & 1); d = 88 + 2 * (i & 1)
            e(f'v_pk_add_f32 {vr(d,2)}, {vr(xf+2*i,2)}, v[14:15] op_sel_hi:[1,0]')
            e(f'v_pk_fma_f32 {vr(t,2)}, {vr(d,2)}, {vr(d,2)}, {vr(t,2)}')
        e('v_pk_add_f32 v[8:9], v[8:9], v[10:11]')
        e('v_add_f32 v8, v8, v9')
        allred(8)
        e(f'v_mul_f32 v10, {inv}, v8')
        ln_scalars(e, 12, 10, 8)
        e('v_sub_f32 v14, 0, v12')
        for i in range(18):
            e(f'v_pk_add_f32 {vr(xf+2*i,2)}, {vr(xf+2*i,2)}, v[14:15] op_sel_hi:[1,0]')
            e(f'v_cvt_pk_bf16_f32 v{xp+i}, v{xf+2*i}, v{xf+2*i+1}')
        unpack()
        for i in range(18):
            e(f'v_pk_mul_f32 {vr(xf+2*i,2)}, {vr(xf+2*i,2)}, v[10:11] op_sel_hi:[1,0]')
            e(f'v_cvt_pk_bf16_f32 v{xp+i}, v{xf+2*i}, v{xf+2*i+1}')
    T2 = 32 * LD
    stamp(e, 2)
    for c in range(9): e(f'ds_write_b64 v5, {vr(xp+2*c,2)} offset:{c*128}')
    e(f's_waitcnt vmcnt({npf})')
    e(f'v_add_u32 v5, {T2}, v5')
    for c in range(9): e(f'ds_write_b64 v5, {vr(wp+2*c,2)} offset:{c*128}')
    e('v_lshlrev_b32 v6, 3, v1'); e('v_bfe_u32 v7, v0, 2, 2'); e('v_add_u32 v6, v6, v7'); e(f'v_mul_u32_u24 v6, {LD}, v6')
    e('v_and_b32 v7, 3, v0'); e('v_lshl_add_u32 v6, v7, 3, v6'); e('s_lshl_b32 s33, s3, 5'); e('v_add_u32 v6, s33, v6')
    e('s_lshl_b32 s33, s3, 4'); e('v_add_u32 v7, s33, v2')
    e(f'v_mul_u32_u24 v8, {HT_LD}, v7'); e('v_lshl_add_u32 v8, v1, 4, v8')
    e(f'v_mul_u32_u24 v9, {GE_LD}, v7'); e('v_lshl_add_u32 v9, v1, 4, v9')
    e('s_waitcnt lgkmcnt(0)')
    e('s_barrier')
    stamp(e, 3)
    for job in range(2):
        if job == 1:
            e('s_cmp_ge_u32 s6, 18'); e('s_cbranch_scc1 k0_done')
            e(f'v_add_u32 v6, {T2}, v6')
        base, ld, va = ((HT_OFF, HT_LD, 8), (GE_OFF + 4608 * 2, GE_LD, 9))[job]
        e('s_lshl_b32 s33, s6, 6'); e(f's_add_u32 s33, s33, {base}')
        lab = e.newlabel('k0_tr')
        for j in range(5):
            if j == 4:
                e('s_cmp_ge_u32 s3, 4'); e(f's_cbranch_scc1 {lab}')
            d = 16 + j * 4
            e(f'ds_read_b64_tr_b16 {vr(d,2)}, v6 offset:{j*256}')
            e(f'ds_read_b64_tr_b16 {vr(d+2,2)}, v6 offset:{j*256 + 4*LD}')
            e(f's_add_u32 s34, s33, {j*128*ld}')
            e('s_waitcnt lgkmcnt(0)')
            e(f'buffer_store_dwordx4 {vr(d,4)}, v{va}, s[{SWS}:{SWS+3}], s34 offen{" sc1" if OPT.get("wt0", 0) & 2 else ""}')
        e.label(lab)
        e('s_nop 1')
    e.label('k0_done')
    e('s_waitcnt vmcnt(0)')
    endp(e, 0, SWS)
    e.label('k0_exit')
    e('s_endpgm')
    return name, 256, K0_LDS
```

```python
import math
from asmlib import Emit, Alloc, vr, sr, f2u
from gen import *

K1_SLOT = 28672
SW1, SWS, SB1 = 8, 12, 16
MSK = 40
LOG2E = 1.4426950408889634

class Mix:
    def __init__(s, e, step, budget):
        s.e = e; s.step = step; s.budget = budget; s.acc = 0; s.on = False; s.total = 0
    def __call__(s, t):
        mn = t.split()[0]
        if s.on and mn.startswith('v_') and s.acc >= s.budget:
            s.acc = 0; s.step()
        s.e(t)
        c = 36 if 'mfma' in mn else 8 if (mn[2:5] in ('exp', 'rcp') or mn.startswith(('v_pk', 'buffer'))) else 4 if mn.startswith('v_') else 2
        s.acc += c; s.total += c
    def label(s, n): s.e.label(n)
    def newlabel(s, p): return s.e.newlabel(p)
    @property
    def hist(s): return s.e.hist
    @hist.setter
    def hist(s, v): s.e.hist = v

def attn(e, tag, unroll=0, vm=None, mid=None):
    A = Alloc('v', 1, 248)
    vK1 = A.get(); vK2 = A.get(); vVl = A.get(); vVm = A.get(); vV = A.get(); vO = A.get(); vO2 = A.get()
    q2r = A.get(); vm_ = A.get(); t0 = A.get(); nm = A.get(2, 2); cc = A.get(2, 2)
    PM = A.get(8); K2 = A.get(6, 2); Q1 = A.get(4, 4); Q2 = A.get(8, 2); KD = A.get(4, 4)
    VR = A.get(56, 4); T = A.get(144, 4)
    Tt = lambda t: T + 16 * t
    kloc = {2: Tt(1) + 8, 3: Tt(1) + 12, 4: Tt(2) + 8, 5: Tt(2) + 12, 6: Tt(3) + 8, 7: Tt(3) + 12, 8: Tt(4) + 8, 0: Tt(4) + 12, 1: KD}
    vloc = {0: VR, 8: VR + 8, 1: VR + 16, 2: VR + 24, 3: VR + 32, 4: VR + 40, 5: VR + 48, 6: VR, 7: VR + 8}
    vloc = {t: (b, b + 4) for t, b in vloc.items()}
    ws = f's[{SWS}:{SWS+3}]'
    e(f'v_and_b32 v{t0}, 31, v0'); e(f'v_lshrrev_b32 v{vm_}, 5, v0')
    e(f'v_lshlrev_b32 v{vK1}, 5, v{t0}'); e(f'v_lshl_add_u32 v{vK1}, v{vm_}, 4, v{vK1}')
    e(f'v_lshlrev_b32 v{vK2}, 3, v{t0}'); e(f'v_lshl_add_u32 v{vK2}, v{vm_}, 8, v{vK2}')
    e(f'v_cmp_gt_u32 vcc, 18, v{t0}')
    e(f'v_lshlrev_b32 v{vVl}, 4, v{vm_}'); e(f'v_add_u32 v{vVl}, {576*32}, v{vVl}')
    e(f'v_cndmask_b32 v{vVl}, v{vVl}, v{vK1}, vcc')
    e(f'v_mov_b32 v{vV}, 576'); e(f'v_cndmask_b32 v{vVm}, 0, v{vV}, vcc')
    e(f'v_lshlrev_b32 v{vO}, 1, v{t0}'); e(f'v_lshl_add_u32 v{vO}, v{vm_}, 14, v{vO}')
    e(f'v_lshl_add_u32 v{vO2}, v{vm_}, 30, v{vO}')
    e(f'v_lshlrev_b32 v{nm}, 2, v{vm_}'); e(f'v_sub_u32 v{nm}, v{t0}, v{nm}')
    for r in range(16):
        e(f'v_cmp_gt_i32 s[{MSK+2*r}:{MSK+2*r+1}], {8*(r>>2)+(r&3)}, v{nm}')
    e(f'v_mov_b32 v{nm}, 0xffff'); e(f'v_mov_b32 v{nm+1}, 0xffff0000')
    for i in range(8):
        e(f'v_cndmask_b32 v{PM+i}, 0, v{nm}, s[{MSK+4*i}:{MSK+4*i+1}]')
        e(f'v_cndmask_b32 v{t0}, 0, v{nm+1}, s[{MSK+4*i+2}:{MSK+4*i+3}]')
        e(f'v_or_b32 v{PM+i}, v{PM+i}, v{t0}')
    for i in (1, 3, 4, 6): e(f'v_mov_b32 v{Q2+i}, 0')
    e(f'v_mov_b32 v{K2+5}, 0')
    if OPT.get('vm', 1):
        for i in range(56): e(f'v_mov_b32 v{VR+i}, {hex(ONES)}')
    e(f'v_cmp_gt_u32 s[72:73], 32, v0')
    c = 18 ** -0.5 * LOG2E
    e(f'v_mov_b32 v{cc}, {hex(f2u(c))}')
    e('s_mov_b32 s38, 0xff800000')
    def kaddr(sj):
        e(f's_lshr_b32 s30, s{sj}, 6'); e('s_lshl_b32 s31, s4, 2'); e('s_add_u32 s30, s30, s31')
        e(f's_and_b32 s31, s{sj}, 63')
        e('s_lshl_b32 s24, s30, 16'); e('s_lshl_b32 s25, s31, 10'); e('s_add_u32 s24, s24, s25')
        e(f's_add_u32 s27, s24, {QB_OFF}')
        e(f's_add_u32 s24, s24, {KB_OFF - 8192}')
        e('s_add_u32 s25, s24, 4096'); e('s_add_u32 s26, s24, 8192')
        e('s_lshr_b32 s28, s30, 1'); e('s_lshl_b32 s28, s28, 14'); e('s_and_b32 s29, s30, 1'); e('s_lshl_b32 s29, s29, 2')
        e('s_add_u32 s28, s28, s29'); e('s_lshl_b32 s29, s31, 8'); e('s_add_u32 s28, s28, s29')
        e(f's_add_u32 s29, s28, {QB_OFF + X2_REL}')
        e(f's_add_u32 s28, s28, {KB_OFF + X2_REL - 2048}')
    if vm is None: vm = []
    def ld(tag_, text): e(text); vm.append(tag_)
    def wait(tag_):
        last = max(i for i, t in enumerate(vm) if t == tag_)
        e(f's_waitcnt vmcnt({min(63, len(vm) - 1 - last)})')
    def loadK(t): ld('K', f'buffer_load_dwordx4 {vr(kloc[t],4)}, v{vK1}, {ws}, s{24 + t // 4} offen offset:{(t % 4) * 1024}')
    def loadQ():
        ld('K', f'buffer_load_dwordx4 {vr(Q1,4)}, v{vK1}, {ws}, s27 offen')
        e(f'v_and_b32 v{t0}, 0xff, v{vK2}')
        ld('K', f'buffer_load_dword v{q2r}, v{t0}, {ws}, s29 offen')
        for i in range(5): ld('K', f'buffer_load_dword v{K2+i}, v{vK2}, {ws}, s28 offen offset:{i*512}')
        loadK(1)
    def loadV(t):
        e(f's_add_i32 s36, s33, {t - 8}'); e('s_max_i32 s36, s36, 0'); e(f's_mul_i32 s36, s36, {2*VT_LD}')
        e(f's_add_u32 s36, s36, {VT_OFF}'); e(f's_add_u32 s37, s36, {VT_LD}')
        if OPT.get('vm', 1): e('s_mov_b32 exec_lo, 0x3ffff'); e('s_mov_b32 exec_hi, 0x3ffff')
        ld(('V', t), f'buffer_load_dwordx4 {vr(vloc[t][0],4)}, v{vV}, {ws}, s36 offen')
        ld(('V', t), f'buffer_load_dwordx4 {vr(vloc[t][1],4)}, v{vV}, {ws}, s37 offen')
        if OPT.get('vm', 1): e('s_mov_b64 exec, -1')
    done = f'k1_{tag}_done'; loop = f'k1_{tag}_loop'
    if not unroll: e('s_cmp_ge_u32 s20, s22'); e(f's_cbranch_scc1 {done}')
    kaddr(20)
    loadQ()
    for t in (8, 0, 7, 6, 5, 4, 3, 2): loadK(t)
    if not unroll:
        e('s_mov_b32 s23, 1')
        e.label(loop); e.hist = []
        vm[:] = ['K'] + ['S'] * 10
    for item in range(max(unroll, 1)):
        body(e, locals(), item == 0, (not unroll) or item < unroll - 1)
    if unroll: return
    assert vm[-10:] == ['S'] * 10 and vm[-11] == 'K', vm
    e('s_cmp_lt_u32 s20, s22'); e(f's_cbranch_scc1 {loop}')
    e.label(done)
    e.label('k1_fpf')
    q_first(e, 35, 4, 34)
    e('s_and_b32 s35, s35, 0xfffc0000'); e('s_and_b32 s34, s4, 1'); e(f's_mul_i32 s34, s34, {8*sum(FRN())}'); e('s_add_u32 s34, s34, s3')
    n27, n29, n30 = FRN()[3], FRN()[2], FRN()[0]
    e(f's_mov_b32 s36, {n27}'); e(f's_mov_b32 s37, {8*(2*n30 + n29)}')
    e('s_cmp_eq_u32 s5, 28'); e(f's_cselect_b32 s37, {8*(2*n30 + n29 + n27)}, s37')
    e('s_cmp_eq_u32 s5, 29'); e(f's_cselect_b32 s37, {16*n30}, s37'); e(f's_cselect_b32 s36, {n29}, s36')
    e('s_cmp_eq_u32 s5, 30'); e('s_cselect_b32 s37, 0, s37'); e(f's_cselect_b32 s36, {n30}, s36')
    e('s_cmp_eq_u32 s5, 31'); e(f's_cselect_b32 s37, {8*n30}, s37'); e(f's_cselect_b32 s36, {n30}, s36')
    e('s_add_u32 s34, s34, s37'); e('s_lshl_b32 s34, s34, 13'); e('s_add_u32 s35, s35, s34')
    e('v_lshlrev_b32 v255, 7, v0')
    e.label('k1_fpl')
    e('buffer_load_dword v254, v255, s[16:19], s35 offen'); e(f's_add_u32 s35, s35, {8*8192}')
    e('s_sub_u32 s36, s36, 1'); e('s_cmp_lg_u32 s36, 0'); e('s_cbranch_scc1 k1_fpl')
    stamp(e, 2)
    e('s_waitcnt vmcnt(0)')
    endp(e, 1, SWS)

def FRN():
    a, b, c = OPT.get('f30', 6), OPT.get('f29', 6), OPT.get('f27', 3)
    return [a, a, b, c, c]

def body(e, L, firstitem, nxt):
    globals().update({k: L[k] for k in ('vK1 vK2 vVl vVm vV vO vO2 q2r vm_ t0 nm cc PM K2 Q1 Q2 KD VR T Tt kloc vloc ws c kaddr vm ld wait loadK loadQ loadV unroll mid').split()})
    if firstitem and mid: mid(0)
    e('s_mov_b32 s32, s30'); e('s_mov_b32 s33, s31')
    e(f'v_mad_u32_u24 v{vV}, v{vVm}, s32, v{vVl}')
    for t in (0, 8, 1, 2, 3, 4, 5): loadV(t)
    if firstitem and mid: mid(1)
    if nxt:
        e('s_add_u32 s20, s20, s21'); e('s_sub_u32 s34, s22, 1'); e('s_min_u32 s34, s34, s20')
        kaddr(34)
    if not unroll:
        l1 = e.newlabel('k1a')
        e('s_cmp_eq_u32 s23, 0'); e(f's_cbranch_scc1 {l1}')
        e('s_waitcnt vmcnt(14)'); e('s_mov_b32 s23, 0')
        stamp(e, 1)
        e.label(l1)
    wait('K')
    e(f'v_cndmask_b32 v{Q2}, 0, v{q2r}, s[72:73]'); e(f'v_cndmask_b32 v{Q2+5}, 0, v{q2r}, s[72:73]')
    e(f'v_cndmask_b32 v{Q2+2}, v{q2r}, 0, s[72:73]'); e(f'v_cndmask_b32 v{Q2+7}, v{q2r}, 0, s[72:73]')
    order = [8, 0, 7, 6, 5, 4, 3, 2, 1]
    first = [True]
    def inval(t):
        if t == 8: return
        l = e.newlabel('k1v')
        e(f's_cmp_ge_u32 s33, {8 - t}'); e(f's_cbranch_scc1 {l}')
        h = list(e.hist)
        on = getattr(e, 'on', False)
        if on: e.on = False
        for r in range(16): e(f'v_mov_b32 v{Tt(t)+r}, s38')
        if on: e.on = True; e.acc -= 64; e.total -= 64
        e.label(l); e.hist = h + [None]
    def mx(t):
        b = Tt(t)
        for r in range(0, 16, 2):
            if first[0]: e(f'v_max_f32 v{vm_}, v{b+r}, v{b+r+1}'); first[0] = False
            else: e(f'v_max3_f32 v{vm_}, v{b+r}, v{b+r+1}, v{vm_}')
    def post(t):
        if t == 8: return
        inval(t)
        if t == 0:
            for r in range(16):
                e(f'v_cndmask_b32 v{Tt(0)+r}, v{Tt(8)+r}, v{Tt(0)+r}, s[{MSK+2*r}:{MSK+2*r+1}]')
        mx(t)
    for n, t in enumerate(order):
        a = vr(Tt(t), 16)
        e(f'v_mfma_f32_32x32x16_bf16 {a}, {vr(kloc[t],4)}, {vr(Q1,4)}, 0')
        e(f'v_mfma_f32_32x32x8bf16_1k {a}, {vr(K2 + (t // 4) * 2, 2)}, {vr(Q2 + ((t >> 1) & 1) * 4 + (t & 1) * 2, 2)}, {a}')
        if n >= 2: post(order[n - 2])
    if nxt: loadQ()
    post(2)
    post(1)
    e(f'v_mov_b32 v{t0}, v{vm_}')
    e(f'v_permlane32_swap_b32 v{vm_}, v{t0}')
    e(f'v_max_f32 v{vm_}, v{vm_}, v{t0}')
    e(f'v_mul_f32 v{nm}, {hex(f2u(-c))}, v{vm_}')
    O = vr(Tt(8), 16)
    pend = []
    def pv(t, p, firstc=False):
        wait(('V', t))
        e(f'v_mfma_f32_32x32x16_bf16 {O}, {vr(vloc[t][0],4)}, {vr(p,4)}, {"0" if firstc else O}')
        e(f'v_mfma_f32_32x32x16_bf16 {O}, {vr(vloc[t][1],4)}, {vr(p+4,4)}, {O}')
    for t in range(8):
        b = Tt(t)
        for r in range(0, 16, 2):
            if OPT.get('pk', 1): e(f'v_pk_fma_f32 {vr(b+r,2)}, {vr(b+r,2)}, {vr(cc,2)}, {vr(nm,2)} op_sel_hi:[1,0,0]')
            else:
                e(f'v_fma_f32 v{b+r}, v{b+r}, v{cc}, v{nm}'); e(f'v_fma_f32 v{b+r+1}, v{b+r+1}, v{cc}, v{nm}')
        for r in range(16):
            e(f'v_exp_f32 v{b+r}, v{b+r}')
            if r == 3 and pend:
                for f in pend: f()
                pend = []
        for i in range(8): e(f'v_cvt_pk_bf16_f32 v{b+i}, v{b+2*i}, v{b+2*i+1}')
        if t == 0:
            for i in range(8):
                e(f'v_and_b32 v{b+8+i}, v{PM+i}, v{b+i}')
                e(f'v_xor_b32 v{b+i}, v{b+i}, v{b+8+i}')
            def f0():
                pv(0, Tt(0) + 8, True); pv(8, Tt(0)); loadV(6); loadV(7)
            pend.append(f0)
        else:
            if t <= 4 and nxt:
                for kt in {1: (2, 3), 2: (4, 5), 3: (6, 7), 4: (8, 0)}[t]: loadK(kt)
            pend.append(lambda t=t: pv(t, Tt(t)))
    for f in pend: f()
    e(f's_mul_i32 s36, s32, {18*4096}'); e('s_lshl_b32 s37, s33, 6'); e('s_add_u32 s36, s36, s37'); e(f's_add_u32 s36, s36, {OT_OFF}')
    o = Tt(8)
    e(f'v_rcp_f32 v{nm}, v{o+10}')
    for r in range(0, 10, 2):
        e(f'v_pk_mul_f32 {vr(o+r,2)}, {vr(o+r,2)}, {vr(nm,2)} op_sel_hi:[1,0]')
    for r in range(0, 10, 2):
        e(f'v_cvt_pk_bf16_f32 v{o+r}, v{o+r}, v{o+r+1}')
    for r in range(10):
        e(f's_add_u32 s37, s36, {(8*(r>>2)+(r&3))*4096}')
        op = 'buffer_store_short_d16_hi' if r & 1 else 'buffer_store_short'
        ld('S', f'{op} v{o+(r&~1)}, v{vO2 if r >= 8 else vO}, {ws}, s37 offen{" sc1" if OPT.get("wt1", 0) & 2 else ""}')

def gen_k1(e, opts):
    name = 'k1_gemm1_attn_kernel'
    D = opts.get('k1d', 5); NA = opts.get('na', 3)
    header(e, name)
    e('s_cmp_ge_u32 s2, 256'); e('s_cbranch_scc1 k1_exit')
    dstart(e)
    e('s_load_dwordx4 s[24:27], s[0:1], 32')
    e('s_load_dwordx2 s[30:31], s[0:1], 80')
    e('s_load_dwordx2 s[28:29], s[0:1], 48')
    e('v_lshrrev_b32 v1, 6, v0')
    e('v_and_b32 v0, 63, v0')
    e('v_readfirstlane_b32 s3, v1')
    e('s_and_b32 s4, s2, 7'); e('s_lshr_b32 s5, s2, 3')
    e('s_waitcnt lgkmcnt(0)')
    srd(e, SW1, 24, W1_BYTES); srd(e, SB1, 26, 4608 * 2); srd(e, SWS, 30, WS_USED)
    e('s_cmp_ge_u32 s5, 27'); e('s_cbranch_scc1 k1_free')
    e('s_mul_i32 s6, s4, 27'); e('s_add_u32 s6, s6, s5')
    e('s_mul_i32 s7, s6, 171'); e('s_lshr_b32 s7, s7, 10')
    e('s_mul_i32 s20, s7, 6'); e('s_sub_u32 s6, s6, s20')
    e('s_cmp_ge_u32 s3, 4'); e('s_cbranch_scc1 k1_loader')
    e('s_setprio 2')
    A = Alloc('v', 1, 256)
    NS = (D + 1) // 2
    va = A.get(NS); vb = A.get(4 * NS); vt = A.get(6); vg = A.get()
    cs = A.get(8, 2)
    acc = A.get(48, 4); fr = A.get(64, 4)
    e('s_lshl_b32 s20, s7, 8'); e('s_lshl_b32 s21, s3, 6'); e('s_add_u32 s20, s20, s21')
    e(f'v_lshrrev_b32 v{vt}, 5, v0')
    e(f'v_lshlrev_b32 v{vt+1}, 3, v{vt}')
    br = 248
    for q in range(4): e(f'buffer_load_dwordx2 {vr(br+2*q,2)}, v{vt+1}, s[{SB1}:{SB1+3}], s20 offen offset:{q*16}')
    e(f'v_bfe_u32 v{vt+2}, v0, 2, 2')
    e(f'v_add_u32 v{vt+3}, v{vt+1}, v{vt+2}'); e(f'v_lshlrev_b32 v{va}, 8, v{vt+3}')
    e(f'v_xor_b32 v{vt+3}, s3, v{vt+2}'); e(f'v_lshl_add_u32 v{va}, v{vt+3}, 6, v{va}')
    e(f'v_bfe_u32 v{vt+3}, v0, 4, 1'); e(f'v_lshl_add_u32 v{va}, v{vt+3}, 5, v{va}')
    e(f'v_and_b32 v{vt+3}, 3, v0'); e(f'v_lshl_add_u32 v{va}, v{vt+3}, 3, v{va}')
    e(f'v_and_b32 v{vt+4}, 31, v0'); e(f'v_bfe_u32 v{vt+3}, v0, 1, 3'); e(f'v_xor_b32 v{vt+3}, v{vt+3}, v{vt}')
    for ks in range(4):
        e(f'v_xor_b32 v{vt+5}, {2*ks}, v{vt+3}'); e(f'v_lshlrev_b32 v{vt+5}, 4, v{vt+5}')
        e(f'v_lshl_add_u32 v{vb+ks}, v{vt+4}, 7, v{vt+5}')
    for s in range(1, NS):
        e(f'v_add_u32 v{va+s}, {2*s*K1_SLOT}, v{va}')
        for ks in range(4): e(f'v_add_u32 v{vb+4*s+ks}, {2*s*K1_SLOT}, v{vb+ks}')
    e('s_mul_i32 s21, s6, 96'); e(f'v_add_u32 v{vt+4}, s21, v{vt+4}'); e(f'v_mul_u32_u24 v{vg}, {GE_LD}, v{vt+4}')
    e(f'v_lshl_add_u32 v{vg}, v{vt}, 4, v{vg}')
    e(f's_add_u32 s22, s20, {GE_OFF}')
    e('s_waitcnt vmcnt(0)')
    for q in range(4):
        for i in range(2):
            e(f'v_lshlrev_b32 v{acc+4*q+2*i}, 16, v{br+2*q+i}'); e(f'v_and_b32 v{acc+4*q+2*i+1}, 0xffff0000, v{br+2*q+i}')
    for r in range(16):
        e(f'v_mov_b32 v{acc+16+r}, v{acc+r}'); e(f'v_mov_b32 v{acc+32+r}, v{acc+r}')
    def reads(slot, ks):
        s, o = slot // 2, (slot % 2) * K1_SLOT
        d = fr + ks * 16
        L = [f'ds_read_b64_tr_b16 {vr(d,2)}, v{va+s} offset:{o + ks*4096}',
             f'ds_read_b64_tr_b16 {vr(d+2,2)}, v{va+s} offset:{o + ks*4096 + 1024}']
        for dt in range(3): L.append(f'ds_read_b128 {vr(d+4+4*dt,4)}, v{vb+4*s+ks} offset:{o + 16384 + dt*4096}')
        return L
    X = opts.get('k1x', 0)
    def stage(slot, last=False, fill=False):
        if X == 2:
            if not last: e('s_barrier')
            return
        for ks in range(4):
            nslot, nks = (slot, ks + 2) if ks < 2 else ((slot + 1) % D, ks - 2)
            R = reads(nslot, nks) if not (last and ks >= 2) else []
            if ks == 2: e('s_waitcnt lgkmcnt(0)')
            elif ks != 3: e('s_waitcnt lgkmcnt(5)')
            d = fr + ks * 16
            for dt in range(3):
                a = vr(acc + 16 * dt, 16)
                e(f'v_mfma_f32_32x32x16_bf16 {a}, {vr(d,4)}, {vr(d+4+4*dt,4)}, {a}')
                if dt == 0 and ks == 2 and not last: e('s_barrier')
                if fill and ks == 1 and dt == 2:
                    e(f'buffer_store_dwordx4 {vr(br,4)}, v{br+4}, s[{SWS}:{SWS+3}], s24 offen{ZF}'); e('s_add_u32 s24, s24, 1024')
                for x in R[2*dt:2*dt+2]: e(x)
    e('s_mul_i32 s24, s7, 6'); e('s_add_u32 s24, s24, s6'); e('s_lshl_b32 s24, s24, 2'); e('s_add_u32 s24, s24, s3')
    for i in range(4): e(f'v_mov_b32 v{br+i}, 0')
    stamp(e, 1)
    e('s_barrier')
    stamp(e, 2)
    for ks in range(2):
        for x in reads(0, ks): e(x)
    if not opts.get('alias', 1): zfill(e, 24, br, br + 4, SWS)
    nit = 32 // D if 32 % D else 32 // D - 1
    e(f's_mov_b32 s23, {nit}')
    e.label('k1_cloop'); e.hist = []
    for s in range(D): stage(s, fill=False)
    e('s_sub_u32 s23, s23, 1'); e('s_cmp_lg_u32 s23, 0'); e('s_cbranch_scc1 k1_cloop')
    rem = 32 - nit * D
    for s in range(rem): stage(s, last=(s == rem - 1))
    stamp(e, 3)
    c0 = -2 * 0.7978845608028654 * LOG2E; c1 = c0 * 0.044715
    e(f'v_mov_b32 v{cs}, {hex(f2u(c0))}'); e(f'v_mov_b32 v{cs+2}, {hex(f2u(c1))}'); e(f'v_mov_b32 v{cs+4}, 1.0')
    e(f's_add_u32 s24, s22, {32*GE_LD}'); e(f's_add_u32 s25, s22, {64*GE_LD}')
    for dt in range(3):
        a = acc + 16 * dt; t = fr + 16 * dt
        for r in range(0, 16, 2): e(f'v_pk_mul_f32 {vr(t+r,2)}, {vr(a+r,2)}, {vr(a+r,2)}')
        for r in range(0, 16, 2): e(f'v_pk_fma_f32 {vr(t+r,2)}, {vr(t+r,2)}, {vr(cs+2,2)}, {vr(cs,2)} op_sel_hi:[1,0,0]')
        for r in range(0, 16, 2): e(f'v_pk_mul_f32 {vr(t+r,2)}, {vr(t+r,2)}, {vr(a+r,2)}')
        for r in range(16): e(f'v_exp_f32 v{t+r}, v{t+r}')
        for r in range(0, 16, 2): e(f'v_pk_add_f32 {vr(t+r,2)}, {vr(t+r,2)}, {vr(cs+4,2)} op_sel_hi:[1,0]')
        for r in range(16): e(f'v_rcp_f32 v{t+r}, v{t+r}')
        for r in range(0, 16, 2): e(f'v_pk_mul_f32 {vr(a+r,2)}, {vr(a+r,2)}, {vr(t+r,2)}')
        for i in range(8): e(f'v_cvt_pk_bf16_f32 v{a+i}, v{a+2*i}, v{a+2*i+1}')
        for hf in range(2):
            p = a + 4 * hf
            e(f'v_permlane32_swap_b32 v{p}, v{p+2}'); e(f'v_permlane32_swap_b32 v{p+1}, v{p+3}')
            e(f'buffer_store_dwordx4 {vr(p,4)}, v{vg}, s[{SWS}:{SWS+3}], s{(22,24,25)[dt]} offen offset:{hf*32}{" sc1" if OPT.get("wt1", 0) else ""}')
    endp(e, 1, SWS)

    e.label('k1_loader'); e.hist = []
    e('s_setprio 3')
    vo = 248
    SA, SB, SP = 76, 96, 16
    srd(e, SP, 28, W1_BYTES)
    e('v_lshrrev_b32 v1, 4, v0'); e('v_bfe_u32 v2, v0, 2, 2'); e('v_xor_b32 v2, v2, v1'); e('v_lshlrev_b32 v2, 6, v2')
    e('v_and_b32 v3, 3, v0'); e('v_lshl_add_u32 v2, v3, 4, v2')
    e('v_mul_u32_u24 v3, 9216, v1'); e('v_add_u32 v2, v2, v3')
    e('v_lshrrev_b32 v3, 3, v0'); e(f'v_mul_u32_u24 v3, {HT_LD}, v3'); e('v_and_b32 v4, 7, v0'); e('v_xor_b32 v4, v4, v1')
    e('v_lshl_add_u32 v5, v4, 4, v3')
    e('v_xor_b32 v4, 4, v4'); e('v_lshl_add_u32 v6, v4, 4, v3')
    e('s_lshl_b32 s22, s7, 8')
    e(f's_mul_i32 s23, s6, {32*12288 if opts.get("xc", 0) else 96*HT_LD}')
    e('s_sub_u32 s39, s3, 4'); e('s_mul_i32 s39, s39, 7168')
    for lw in (1, 2, 3):
        e(f's_cmp_eq_u32 s3, {4+lw}'); e(f's_cbranch_scc1 k1_ls{lw}')
    h0 = list(e.hist)
    for lw in range(4):
        if lw: e.label(f'k1_ls{lw}'); e.hist = list(h0)
        for n in range(7):
            i = 7 * lw + n; io = n % 4
            if i < 16: e(f'v_add_u32 v{vo+n}, {4*i*9216 - io*1024}, v2')
            elif opts.get('xc', 0): e('v_lshlrev_b32 v7, 4, v0'); e(f'v_add_u32 v{vo+n}, {HT_OFF + (i-16)*1024 - io*1024}, v7')
            else: e(f'v_add_u32 v{vo+n}, {HT_OFF + 8*(i-16)*HT_LD - io*1024}, v{5 + (i & 1)}')
        for S, isw, so, st in ((SA, lw < 3, 74, 100), (SB, lw < 2, 75, 101)):
            if isw: srd(e, S, 24, W1_BYTES); e(f's_mov_b32 s{so}, s22'); e(f's_mov_b32 s{st}, {64*9216}')
            else: srd(e, S, 30, WS_USED); e(f's_mov_b32 s{so}, s23'); e(f's_mov_b32 s{st}, {12288 if opts.get("xc", 0) else 128}')
        if lw < 3: e('s_branch k1_lgo')
    e.label('k1_lgo'); e.hist = []
    PL = opts.get('pl', 7); NPS = 0
    FR = 16 * sum(FRN())
    TB = opts.get('tb', 1)
    e('s_mul_i32 s34, s4, 27'); e('s_add_u32 s34, s34, s5'); e('s_lshl_b32 s34, s34, 2'); e('s_add_u32 s34, s34, s3'); e('s_sub_u32 s34, s34, 4')
    tbs = [35, 6, 7][:TB]
    for r, sd in enumerate(tbs):
        e(f's_add_u32 s{sd}, s34, {864*r + FR}'); e(f's_add_u32 s33, s34, {864*r}')
        for th in (672 - FR, 1312 - 2*FR, 1952 - 3*FR):
            e(f's_cmp_ge_u32 s33, {th}'); e(f's_cselect_b32 s32, {FR}, 0'); e(f's_add_u32 s{sd}, s{sd}, s32')
        e(f's_lshl_b32 s{sd}, s{sd}, 13')
    SPF = opts.get('spf', 0)
    if SPF: e('s_add_u32 s35, s35, 124')
    e('v_lshlrev_b32 v255, 7, v0')
    DFL = {0: '', 1: ' nt', 2: ' sc1', 3: ' sc0 sc1', 4: ' sc0 sc1 nt', 5: ' sc0'}[opts.get('dfl', 0)]
    PFL = {0: '', 1: ' nt', 2: ' sc1', 3: ' sc0 sc1', 4: ' sc0 sc1 nt'}[opts.get('pfl', 0)]
    NA2 = opts.get('na2', 4)
    per = 4 + NA2
    e(f's_mul_i32 s20, s5, {per}'); e(f's_add_u32 s22, s20, {per}'); e('s_add_u32 s20, s20, s3'); e('s_sub_u32 s20, s20, 4'); e('s_mov_b32 s21, 4')
    if 0 < NA2 < 4: e(f's_cmp_ge_u32 s3, {4+NA2}'); e('s_cbranch_scc1 k1_lone')
    h0 = list(e.hist)
    for na in ((2, 1) if 0 < NA2 < 4 else (2,) if NA2 else (1,)):
        if na == 1 and NA2: e.label('k1_lone'); e.hist = list(h0)
        for dry in (True, False):
            ee = Emit() if dry else e
            vm = []; st = dict(j=1, pf=0)
            def issue(stg):
                for n in range(7 if X != 1 else 0):
                    if n % 4 == 0: ee(f's_add_u32 m0, s39, {(stg % D)*K1_SLOT + n*1024}')
                    S, so = (SA, 74) if n < 2 else (SB, 75)
                    ee(f'buffer_load_dwordx4 v{vo+n}, s[{S}:{S+3}], s{so} offen offset:{(n%4)*1024}{DFL} lds'); vm.append(('D', stg))
                if opts.get('xs', 0) and stg % 4 == 3:
                    for _ in range(3): ee('s_sub_u32 s74, s74, s100'); ee('s_sub_u32 s75, s75, s101')
                else:
                    ee('s_add_u32 s74, s74, s100'); ee('s_add_u32 s75, s75, s101')
            def waitD(stg):
                idx = [i for i, t in enumerate(vm) if t == ('D', stg)]
                if idx: ee(f's_waitcnt vmcnt({min(63, len(vm) - 1 - idx[-1])})')
            def step():
                j = st['j']
                if j > 31: return
                st['j'] += 1
                ee('s_setprio 3')
                waitD(j); ee('s_barrier')
                if j - 1 + D < 32: issue(j - 1 + D)
                if j - 1 + D == 31 + opts.get('tbd', 0):
                    for sd in tbs[SPF:]:
                        ee(f's_mov_b32 m0, {D*K1_SLOT}')
                        ee(f'buffer_load_dword v255, s[{SP}:{SP+3}], s{sd} offen lds'); vm.append('pf')
                if SPF:
                    for _ in range(2 if j == 1 else 1):
                        ee('s_waitcnt lgkmcnt(13)'); ee(f's_buffer_load_dwordx2 vcc, s[{SP}:{SP+3}], s35'); ee('s_add_u32 s35, s35, 256')
                if opts.get('pf2', 0) and j >= opts.get('pf2s', 1) and st['pf'] < NPS:
                    ee(f's_mov_b32 m0, {D*K1_SLOT}')
                    ee(f'buffer_load_dword v255, s[{SP}:{SP+3}], s35 offen{PFL} lds'); vm.append('pf')
                    ee(f's_add_u32 s35, s35, {PL*128}'); st['pf'] += 1
                ee(f's_setprio {opts.get("aprio", 3)}')
            def mid(k):
                if k == 0:
                    waitD(0); ee('s_barrier'); stamp(ee, 2); issue(2)
                else:
                    for stg in range(3, D): issue(stg)
                    ee(f's_setprio {opts.get("aprio", 3)}'); M.on = True; M.acc = 0; M.total = 0
            issue(0); issue(1)
            M = Mix(ee, step, 1 << 30 if dry else budget)
            attn(M, f'l{na}', unroll=na, vm=vm, mid=mid)
            if dry: budget = M.total // opts.get('spread', 27)
        stamp(e, 3)
        while st['j'] <= 31: step()

        e('s_waitcnt vmcnt(0) lgkmcnt(0)')
        endp(e, 1, SWS)

    e.label('k1_free'); e.hist = []
    e('s_sub_u32 s20, s5, 27'); e('s_lshl_b32 s20, s20, 3'); e('s_add_u32 s20, s20, s3'); e(f's_add_u32 s20, s20, {27*per}')
    n2 = min(5, (256 - 27*per - 40 + 7) // 8) if 256 - 27*per > 40 else 0
    srd(e, 16, 28, W1_BYTES)
    if per == 8:
        FW = opts.get('fw1', 3)
        l = e.newlabel('k1fw')
        e('s_cmp_lt_u32 s5, 30'); e(f's_cbranch_scc1 {l}')
        e('s_lshl_b32 s34, s4, 1'); e('s_add_u32 s34, s34, s5'); e('s_sub_u32 s34, s34, 30'); e('s_lshl_b32 s34, s34, 3'); e('s_add_u32 s34, s34, s3')
        e(f's_add_u32 s34, s34, {2304 - 128*FW}'); e('s_lshl_b32 s34, s34, 13'); e('v_lshlrev_b32 v255, 7, v0')
        for i in range(FW):
            e(f'buffer_load_dword v254, v255, s[{SW1}:{SW1+3}], s34 offen'); e(f's_add_u32 s34, s34, {128*8192}')
        e('s_branch k1_fpf')
        e.label(l)
        e('s_mov_b32 s21, 16'); e('s_mov_b32 s22, 248')
        e('s_cmp_eq_u32 s5, 29'); e('s_cselect_b32 s22, 256, s22'); e('s_cselect_b32 s23, 16, 0'); e('s_add_u32 s20, s20, s23')
    else:
        e('s_mov_b32 s21, 40'); e('s_mov_b32 s22, 256')
    attn(e, 'f')
    e.label('k1_exit')
    e('s_endpgm')
    return name, 256, D * K1_SLOT + 256
```

```python
from asmlib import Emit, Alloc, vr, sr, f2u
from gen import *

K2_SLOT = 34816
SW2, SWS, SX, SB2, SO = 8, 12, 16, 20, 24
OWN = {0: range(0, 5), 1: range(5, 9), 2: range(9, 14), 3: range(14, 18)}

def gen_k2(e, opts):
    name = 'k2_gemm2_kernel'
    D = opts.get('k2d', 4)
    header(e, name)
    ws = f's[{SWS}:{SWS+3}]'
    e('s_cmp_ge_u32 s2, 256'); e('s_cbranch_scc1 k2_exit')
    dstart(e)
    e('s_load_dwordx2 s[28:29], s[0:1], 0')
    e('s_load_dwordx4 s[32:35], s[0:1], 48')
    e('s_load_dwordx2 s[36:37], s[0:1], 64')
    e('s_load_dwordx2 s[30:31], s[0:1], 80')
    e('v_lshrrev_b32 v1, 6, v0')
    e('v_and_b32 v0, 63, v0')
    e('v_readfirstlane_b32 s3, v1')
    e('s_and_b32 s4, s2, 7'); e('s_lshr_b32 s5, s2, 3')
    e('s_lshr_b32 s6, s4, 1')
    e('s_and_b32 s7, s4, 1'); e('s_lshl_b32 s7, s7, 3'); e('s_lshr_b32 s38, s5, 2'); e('s_add_u32 s7, s7, s38')
    e('s_and_b32 s5, s5, 3')
    e('s_mul_i32 s39, s6, 20'); e('s_cmp_lg_u32 s6, 0'); e('s_addc_u32 s39, s39, 0')
    e('s_cmp_eq_u32 s6, 0'); e('s_cselect_b32 s40, 21, 20')
    e('s_waitcnt lgkmcnt(0)')
    srd(e, SW2, 32, W1_BYTES); srd(e, SWS, 30, WS_USED); srd(e, SX, 28, X_BYTES); srd(e, SB2, 34, 4096); srd(e, SO, 36, X_BYTES)
    e('s_cmp_ge_u32 s3, 4'); e('s_cbranch_scc1 k2_loader')
    e('s_setprio 2')
    A = Alloc('v', 1, 256)
    vw0 = A.get(2); vg0 = A.get(2); vw = A.get(2); vg = A.get(2); vt = A.get(6); vo = A.get(); vp = A.get(); vb2 = A.get(2, 2)
    xr = A.get(10, 2)
    acc = A.get(72, 4); gr = A.get(24, 4); wr = A.get(16, 4); pr = A.get(60, 4)
    e(f'v_and_b32 v{vt}, 15, v0'); e(f'v_lshrrev_b32 v{vt+1}, 4, v0')
    e('s_lshl_b32 s41, s7, 7'); e('s_lshl_b32 s42, s3, 5'); e('s_add_u32 s41, s41, s42')
    e('s_lshr_b32 s42, s6, 1'); e('s_lshl_b32 s42, s42, 4'); e('s_add_u32 s41, s41, s42')
    e(f'v_add_u32 v{vt+2}, s41, v{vt}')
    e(f'v_mul_u32_u24 v{vo}, 1152, v{vt+2}'); e(f'v_lshl_add_u32 v{vo}, v{vt+1}, 3, v{vo}')
    e(f'v_lshlrev_b32 v{vt+2}, 1, v{vt+2}')
    e('s_mul_i32 s43, s5, 288'); e('s_and_b32 s42, s6, 1'); e('s_mul_i32 s42, s42, 160'); e('s_add_u32 s43, s43, s42')
    e(f'buffer_load_ushort v{vb2}, v{vt+2}, s[{SB2}:{SB2+3}], 0 offen')
    for i in range(5):
        e(f'buffer_load_dwordx2 {vr(xr+2*i,2)}, v{vo}, s[{SX}:{SX+3}], s43 offen offset:{i*32}')
    e(f'v_bfe_u32 v{vt+3}, v0, 2, 2')
    e(f'v_lshl_add_u32 v{vt+4}, v{vt+1}, 3, v{vt+3}'); e(f'v_lshlrev_b32 v{vw0}, 8, v{vt+4}')
    e(f'v_and_b32 v{vt+4}, 3, v0'); e(f'v_lshl_add_u32 v{vw0}, v{vt+4}, 3, v{vw0}')
    e(f'v_and_b32 v{vt+4}, 1, v{vt+1}'); e(f'v_lshl_add_u32 v{vt+3}, v{vt+4}, 2, v{vt+3}')
    e('s_lshl_b32 s42, s3, 1'); e(f'v_xor_b32 v{vt+3}, s42, v{vt+3}')
    e(f'v_xor_b32 v{vt+4}, 1, v{vt+3}')
    e(f'v_lshl_add_u32 v{vw0+1}, v{vt+4}, 5, v{vw0}'); e(f'v_lshl_add_u32 v{vw0}, v{vt+3}, 5, v{vw0}')
    e(f'v_lshrrev_b32 v{vt+3}, 1, v{vt}'); e(f'v_xor_b32 v{vt+3}, v{vt+3}, v{vt+1}')
    e(f'v_lshlrev_b32 v{vt+4}, 7, v{vt}')
    e(f'v_lshl_add_u32 v{vg0}, v{vt+3}, 4, v{vt+4}')
    e(f'v_xor_b32 v{vt+3}, 4, v{vt+3}'); e(f'v_lshl_add_u32 v{vg0+1}, v{vt+3}, 4, v{vt+4}')
    for i in range(2): e(f'v_mov_b32 v{vw+i}, v{vw0+i}'); e(f'v_mov_b32 v{vg+i}, v{vg0+i}')
    for i in range(72): e(f'v_mov_b32 v{acc+i}, 0')
    e(f'v_lshlrev_b32 v{vp}, 4, v0')
    e('s_mov_b32 s44, 0')
    lg = []
    def rdW(kk):
        for st in range(2):
            d = wr + kk * 8 + st * 4
            for j in range(2):
                e(f'ds_read_b64_tr_b16 {vr(d+2*j,2)}, v{vw+st} offset:{kk*8192 + j*1024}'); lg.append(('W', kk))
    def rdG(u):
        kk, dt = divmod(u, 9)
        if dt == 0: rdW(kk)
        e(f'ds_read_b128 {vr(gr + (u % 6) * 4, 4)}, v{vg+kk} offset:{16384 + dt*2048}'); lg.append(('G', u))
    def waitfor(u):
        idx = [i for i, t in enumerate(lg) if t == ('G', u)]
        if not idx: return
        k = len(lg) - 1 - idx[-1]
        e(f's_waitcnt lgkmcnt({k})')
        del lg[:idx[-1] + 1]
    X = opts.get('k1x', 0)
    def stage(last):
        if X == 2:
            if not last: e('s_barrier')
            return
        for u in range(18):
            kk, dt = divmod(u, 9)
            if u == 14:
                e('s_waitcnt lgkmcnt(0)'); lg.clear()
            else: waitfor(u)
            for st in range(2):
                a = vr(acc + (st * 9 + dt) * 4, 4)
                e(f'v_mfma_f32_16x16x32_bf16 {a}, {vr(gr + (u % 6) * 4, 4)}, {vr(wr + kk*8 + st*4, 4)}, {a}')
                if st == 0:
                    if u == 14 and not last:
                        e(f's_add_u32 s44, s44, {K2_SLOT}'); e(f's_cmp_ge_u32 s44, {D*K2_SLOT}'); e('s_cselect_b32 s44, 0, s44')
                        e('s_barrier')
                        for i in range(2): e(f'v_add_u32 v{vw+i}, s44, v{vw0+i}'); e(f'v_add_u32 v{vg+i}, s44, v{vg0+i}')
                    if u < 12: rdG(u + 4)
                    elif u == 12: rdG(16);
                    elif u >= 14 and not last: rdG(u - 14)
                elif u == 12: rdG(17)
    e('s_barrier')
    stamp(e, 1)
    for u in range(4): rdG(u)
    lg0 = list(lg)
    e('s_sub_u32 s45, s40, 1')
    e.label('k2_cloop'); e.hist = []
    stage(False)
    assert lg == lg0, (lg, lg0)
    e('s_sub_u32 s45, s45, 1'); e('s_cmp_lg_u32 s45, 0'); e('s_cbranch_scc1 k2_cloop')
    stage(True)
    stamp(e, 2)
    e('s_lshl_b32 s46, s7, 2'); e('s_add_u32 s46, s46, s5')
    SF = 'sc0 sc1' if opts.get('xf', 0) & 1 else 'sc1'; LF = 'sc0 sc1' if opts.get('xf', 0) & 2 else 'sc1'
    e(f's_mul_i32 s47, s46, 135168'); e(f's_mov_b32 s48, {PART_OFF}')
    if opts.get('alias', 1): e('s_cmp_ge_u32 s46, 52'); e(f's_mov_b32 s48, {QB_OFF}'); e(f's_cselect_b32 s48, {(HT_OFF - 52*135168) & 0xffffffff}, s48')
    e('s_add_u32 s47, s47, s48'); e('s_mul_i32 s48, s3, 2560'); e('s_add_u32 s52, s47, s48')
    e(f's_mul_i32 s48, s3, 3072'); e('s_add_u32 s47, s47, s48')
    def slot(o, src, sd=50): return f's_add_u32 s{sd}, s{52 if o & 1 else 47}, {(0, 36864, 67584, 104448)[o] + ((src - o - 1) % 4) * 4 * (2560 if o & 1 else 3072)}'
    e(f'v_lshlrev_b32 v{vt+4}, 3, v0')
    e('s_mov_b32 s49, 0xffff0000')
    e('s_waitcnt vmcnt(0)')
    for q in range(1, 4):
        e(f's_cmp_eq_u32 s6, {q}'); e(f's_cbranch_scc1 k2_q{q}')
    h0 = list(e.hist)
    for q in range(4):
        if q: e.label(f'k2_q{q}'); e.hist = list(h0)
        own = list(OWN[q])
        for gs, qq in [(gs, qq) for gs in ((0, 1), (2,)) for qq in (1, 2, 3)]:
            o = (q + qq) % 4
            tl = list(OWN[o]); b = acc + 4 * tl[0]; nv = 4 * len(tl)
            e(slot(o, q))
            for g in gs:
                for p in range(4):
                    j = 7 * g + 2 * p; d = b + 4 * g + p
                    if p < 3 and j < nv: e(f'v_cvt_pk_bf16_f32 v{d}, v{b+j}, v{b+j+1}')
                    elif p == 3 and g < 2: e(f'v_cvt_pk_bf16_f32 v{d}, v{b+j}, v{b+j}'); e(f'v_or_b32 v{d}, s49, v{d}')
                    elif p == 3 or (nv == 16 and p == 1): e(f'v_mov_b32 v{d}, s49')
                if g < 2 or nv == 20: e(f'buffer_store_dwordx4 {vr(b+4*g,4)}, v{vp}, {ws}, s50 offen offset:{g * 1024} {SF}')
                else: e(f'buffer_store_dwordx2 {vr(b+8,2)}, v{vt+4}, {ws}, s50 offen offset:2048 {SF}')
        stamp(e, 3)
        srcs = [(q + 1 + k) % 4 for k in range(3)]
        n = len(own)
        for k, qq in enumerate(srcs): e(slot(q, qq, 53 + k))
        def poll(part):
            for k in range(3):
                if part == 0:
                    for j in range(2):
                        e(f'buffer_load_dwordx4 {vr(pr + k*12 + 4*j, 4)}, v{vp}, {ws}, s{53+k} offen offset:{j*1024} {LF}')
                elif n == 5: e(f'buffer_load_dwordx4 {vr(pr + k*12 + 8, 4)}, v{vp}, {ws}, s{53+k} offen offset:2048 {LF}')
                else: e(f'buffer_load_dwordx2 {vr(pr + k*12 + 8, 2)}, v{vt+4}, {ws}, s{53+k} offen offset:2048 {LF}')
        tmp = pr + 40
        e(f'v_lshlrev_b32 v{vb2}, 16, v{vb2}')
        for i, t in enumerate(own):
            a = acc + 4 * t
            for h in range(2):
                u = tmp + 4 * (i & 1) + 2 * h
                e(f'v_lshlrev_b32 v{u}, 16, v{xr+2*i+h}'); e(f'v_and_b32 v{u+1}, 0xffff0000, v{xr+2*i+h}')
                e(f'v_pk_add_f32 {vr(a+2*h,2)}, {vr(a+2*h,2)}, {vr(vb2,2)} op_sel_hi:[1,0]')
                e(f'v_pk_add_f32 {vr(a+2*h,2)}, {vr(a+2*h,2)}, {vr(u,2)}')
        e('s_mov_b32 s51, 0x100000')
        lp = f'k2_poll{q}'
        PW = opts.get('pw', 2)
        if PW: e('s_waitcnt vmcnt(0)')
        if PW == 2:
            m3 = 11 if n == 5 else 9
            poll(0); poll(1)
            e('s_waitcnt vmcnt(0)')
            e(f'v_min3_u32 v{vt}, v{pr+3}, v{pr+7}, v{pr+15}'); e(f'v_min3_u32 v{vt+1}, v{pr+19}, v{pr+27}, v{pr+31}'); e(f'v_min3_u32 v{vt+2}, v{pr+m3}, v{pr+12+m3}, v{pr+24+m3}')
            e(f'v_min3_u32 v{vt}, v{vt}, v{vt+1}, v{vt+2}')
            e(f'v_cmp_gt_u32 vcc, s49, v{vt}')
            e(f's_cbranch_vccz k2_ok{q}')
        e.label(lp); e.hist = []
        poll(1)
        e('s_sub_u32 s51, s51, 1'); e('s_cmp_eq_u32 s51, 0'); e('s_cbranch_scc1 k2_exit')
        m3 = 11 if n == 5 else 9
        e('s_waitcnt vmcnt(0)')
        e(f'v_min3_u32 v{vt}, v{pr+m3}, v{pr+12+m3}, v{pr+24+m3}')
        e(f'v_cmp_gt_u32 vcc, s49, v{vt}')
        e(f's_cbranch_vccnz {lp}')
        stamp(e, 4)
        poll(0)
        e('s_waitcnt vmcnt(0)')
        e(f'v_min3_u32 v{vt}, v{pr+3}, v{pr+7}, v{pr+15}'); e(f'v_min3_u32 v{vt+1}, v{pr+19}, v{pr+27}, v{pr+31}'); e(f'v_min_u32 v{vt}, v{vt}, v{vt+1}')
        e(f'v_cmp_gt_u32 vcc, s49, v{vt}')
        e(f's_cbranch_vccnz {lp}')
        e.label(f'k2_ok{q}'); e.hist = []
        for i, t in enumerate(own):
            a = acc + 4 * t
            for k in range(3):
                for h in range(2):
                    u = tmp + 4 * (k & 1) + 2 * h
                    for z in range(2):
                        j = 4 * i + 2 * h + z; p = pr + k * 12 + 4 * (j // 7) + (j % 7) // 2
                        if (j % 7) & 1: e(f'v_and_b32 v{u+z}, 0xffff0000, v{p}')
                        else: e(f'v_lshlrev_b32 v{u+z}, 16, v{p}')
                    e(f'v_pk_add_f32 {vr(a+2*h,2)}, {vr(a+2*h,2)}, {vr(u,2)}')
            e(f'v_cvt_pk_bf16_f32 v{a}, v{a}, v{a+1}'); e(f'v_cvt_pk_bf16_f32 v{a+1}, v{a+2}, v{a+3}')
            e(f'buffer_store_dwordx2 {vr(a,2)}, v{vo}, s[{SO}:{SO+3}], s43 offen offset:{i*32}{" sc1" if opts.get("wto", 0) else ""}')
        endp(e, 2, SWS)

    e.label('k2_loader'); e.hist = []
    stamp(e, 1)
    e('s_setprio 3')
    vo_ = 8
    e('v_lshrrev_b32 v1, 4, v0')
    e('s_cmp_ge_u32 s3, 6'); e('s_cbranch_scc1 k2_ldg')
    h0 = list(e.hist)
    for kind in ('w', 'g'):
        n = 8 if kind == 'w' else 9
        TA = opts.get('ta', 0); n1 = n + (1 if TA else 0)
        if kind == 'w':
            e('v_bfe_u32 v2, v0, 1, 3'); e('v_xor_b32 v2, v2, v1'); e('v_and_b32 v3, 1, v0'); e('v_lshlrev_b32 v3, 4, v3')
            e('v_lshl_add_u32 v3, v1, 12, v3')
            e('v_lshl_add_u32 v5, v2, 5, v3'); e('v_xor_b32 v2, 4, v2'); e('v_lshl_add_u32 v6, v2, 5, v3')
            for i in range(n): e(f'v_add_u32 v{vo_+i}, {4*i*4096 - (i % 4)*1024}, v{5 + ((i >> 1) & 1)}')
            e('s_sub_u32 s41, s3, 4')
            e('s_lshl_b32 s42, s41, 17'); e('s_lshl_b32 s43, s7, 8'); e('s_add_u32 s42, s42, s43')
            e('s_lshl_b32 s43, s39, 18'); e('s_add_u32 s46, s42, s43')
            e(f's_add_u32 s42, s42, {OT_OFF}')
            e('s_lshl_b32 s47, s41, 13')
            step = 64 * 4096; S = SW2
            e('s_lshl_b32 s43, s5, 4'); e('s_mul_i32 s50, s41, 24'); e('s_sub_u32 s43, s43, s50'); e(f's_add_u32 s43, s43, {TA*64}'); e('s_lshl_b32 s43, s43, 12')
            e('v_lshrrev_b32 v2, 1, v0'); e('v_lshlrev_b32 v2, 12, v2'); e('v_and_b32 v3, 1, v0'); e('v_lshl_add_u32 v2, v3, 7, v2'); e('v_add_u32 v2, s43, v2')
            e('v_mov_b32 v7, 0x40000000'); e('v_cmp_gt_u32 vcc, 16, v0'); e('v_cndmask_b32 v7, v7, v2, vcc')
        else:
            e.label('k2_ldg'); e.hist = list(h0)
            e('v_lshrrev_b32 v3, 3, v0'); e(f'v_mul_u32_u24 v3, {GE_LD}, v3'); e('v_and_b32 v4, 7, v0'); e('v_xor_b32 v4, v4, v1')
            e('s_sub_u32 s41, s3, 6'); e('s_lshl_b32 s43, s41, 2'); e('v_xor_b32 v4, s43, v4')
            e('v_lshl_add_u32 v5, v4, 4, v3'); e('v_xor_b32 v4, 4, v4'); e('v_lshl_add_u32 v6, v4, 4, v3')
            for i in range(n): e(f'v_add_u32 v{vo_+i}, {8*i*GE_LD - (i % 4)*1024}, v{5 + (i & 1)}')
            e(f's_mul_i32 s46, s5, {144*GE_LD}'); e(f's_mul_i32 s43, s41, {72*GE_LD}'); e('s_add_u32 s46, s46, s43')
            e('s_lshl_b32 s43, s39, 7'); e('s_add_u32 s46, s46, s43'); e(f's_add_u32 s46, s46, {GE_OFF}')
            e('s_mul_i32 s47, s41, 9216'); e('s_add_u32 s47, s47, 16384')
            step = 128; S = SWS
            e('s_and_b32 s43, s7, 7'); e('s_mul_i32 s43, s43, 18'); e('s_mul_i32 s50, s41, 63'); e('s_sub_i32 s43, s43, s50'); e(f's_mul_i32 s43, s43, {GE_LD}'); e(f's_add_i32 s43, s43, {TA*128}')
            e(f'v_mul_u32_u24 v2, {GE_LD}, v0'); e('s_add_i32 s51, s46, s43')
            e('v_mov_b32 v7, 0x40000000'); e('v_cmp_gt_u32 vcc, 9, v0'); e('v_cndmask_b32 v7, v7, v2, vcc')
            if opts.get('xc', 0):
                e('v_lshlrev_b32 v7, 4, v0')
                for i in range(n): e(f'v_add_u32 v{vo_+i}, {(i - i % 4)*1024}, v7')
                e('s_mul_i32 s46, s5, 81'); e('s_add_u32 s46, s46, s39'); e('s_mul_i32 s46, s46, 18432'); e('s_mul_i32 s43, s41, 9216'); e('s_add_u32 s46, s46, s43')
                e(f's_add_u32 s46, s46, {GE_OFF}'); step = 18432
        if opts.get('xs', 0): step = 0
        e(f's_add_u32 s48, s47, {D*K2_SLOT}')
        e('s_mov_b32 s44, s47')
        e('s_mov_b32 s49, s39')
        def issue():
            if kind == 'w':
                l = e.newlabel('k2sw')
                e('s_cmp_lg_u32 s49, 72'); e(f's_cbranch_scc1 {l}')
                srd(e, SW2, 30, WS_USED); e('s_mov_b32 s46, s42')
                e.label(l)
                e('s_add_u32 s49, s49, 1')
            if TA:
                e(f'buffer_load_dword v20, v7, s[{S}:{S+3}], s{46 if kind == "w" else 51} offen')
                if kind == 'g': e('s_add_u32 s51, s51, 128')
            for i in range(n if X != 1 else 0):
                if i % 4 == 0: e(f's_add_u32 m0, s44, {i*1024}')
                e(f'buffer_load_dwordx4 v{vo_+i}, s[{S}:{S+3}], s46 offen offset:{(i%4)*1024} lds')
            e(f's_add_u32 s46, s46, {step}')
            e(f's_add_u32 s44, s44, {K2_SLOT}'); e('s_cmp_ge_u32 s44, s48'); e('s_cselect_b32 s44, s47, s44')
        stamp(e, 2)
        issue(); stamp(e, 3); issue()
        e(f's_waitcnt vmcnt({n1})'); stamp(e, 4); e('s_barrier')
        for _ in range(D - 2): issue()
        e(f's_sub_u32 s45, s40, {D}')
        lq = f'k2_lq{kind}'
        e.label(lq); e.hist = []
        e(f's_waitcnt vmcnt({n1*(D-2)})'); e('s_barrier')
        issue()
        e('s_sub_u32 s45, s45, 1'); e('s_cmp_lg_u32 s45, 0'); e(f's_cbranch_scc1 {lq}')
        for r in range(D - 2, -1, -1):
            e(f's_waitcnt vmcnt({n1*r})'); e('s_barrier')
        endp(e, 2, SWS)
    e.label('k2_exit')
    e('s_endpgm')
    return name, 256, D * K2_SLOT
```

```python
from asmlib import Emit, Alloc, vr, sr, f2u
from gen import *

K2_SLOT = 34816
SW2, SWS, SX, SB2, SO = 8, 12, 16, 20, 24
OWN = {0: range(0, 5), 1: range(5, 9), 2: range(9, 14), 3: range(14, 18)}

def gen_k2(e, opts):
    name = 'k2_gemm2_kernel'
    D = opts.get('k2d', 4)
    header(e, name)
    ws = f's[{SWS}:{SWS+3}]'
    X = opts.get('k1x', 0)
    e('s_cmp_ge_u32 s2, 256'); e('s_cbranch_scc1 k2_exit')
    dstart(e)
    e('s_load_dwordx2 s[28:29], s[0:1], 0')
    e('s_load_dwordx4 s[32:35], s[0:1], 48')
    e('s_load_dwordx2 s[36:37], s[0:1], 64')
    e('s_load_dwordx2 s[30:31], s[0:1], 80')
    e('v_lshrrev_b32 v1, 6, v0')
    e('v_and_b32 v0, 63, v0')
    e('v_readfirstlane_b32 s3, v1')
    e('s_and_b32 s4, s2, 7'); e('s_lshr_b32 s5, s2, 3')
    e('s_lshr_b32 s6, s4, 1')
    e('s_and_b32 s7, s4, 1'); e('s_lshl_b32 s7, s7, 3'); e('s_lshr_b32 s38, s5, 2'); e('s_add_u32 s7, s7, s38')
    e('s_and_b32 s5, s5, 3')
    e('s_mul_i32 s39, s6, 20'); e('s_cmp_lg_u32 s6, 0'); e('s_addc_u32 s39, s39, 0')
    e('s_cmp_eq_u32 s6, 0'); e('s_cselect_b32 s40, 21, 20')
    e('s_waitcnt lgkmcnt(0)')
    srd(e, SW2, 32, W1_BYTES); srd(e, SWS, 30, WS_USED); srd(e, SX, 28, X_BYTES); srd(e, SB2, 34, 4096); srd(e, SO, 36, X_BYTES)
    e('s_cmp_ge_u32 s3, 4'); e('s_cbranch_scc1 k2_loader')
    e('s_setprio 2')
    A = Alloc('v', 1, 256)
    vw0 = A.get(4); vg0 = A.get(2); vw = A.get(4); vg = A.get(2); vt = A.get(6); vo = A.get(); vp = A.get(); vb2 = A.get(2, 2)
    xr = A.get(10, 2)
    acc = A.get(80, 4); gr = A.get(32, 4); wr = A.get(32, 4); pr = A.get(48, 4)
    e(f'v_and_b32 v{vt}, 15, v0'); e(f'v_lshrrev_b32 v{vt+1}, 4, v0')
    e('s_lshr_b32 s50, s3, 1'); e('s_and_b32 s51, s3, 1')
    e('s_lshl_b32 s41, s7, 7'); e('s_lshl_b32 s42, s50, 6'); e('s_add_u32 s41, s41, s42')
    e('s_lshl_b32 s42, s6, 4'); e('s_add_u32 s41, s41, s42')
    e(f'v_add_u32 v{vt+2}, s41, v{vt}')
    e(f'v_mul_u32_u24 v{vo}, 1152, v{vt+2}'); e(f'v_lshl_add_u32 v{vo}, v{vt+1}, 3, v{vo}')
    e(f'v_lshlrev_b32 v{vt+2}, 1, v{vt+2}')
    e('s_mul_i32 s43, s5, 288'); e('s_mul_i32 s42, s51, 160'); e('s_add_u32 s43, s43, s42')
    e(f'buffer_load_ushort v{vb2}, v{vt+2}, s[{SB2}:{SB2+3}], 0 offen')
    for i in range(5):
        e(f'buffer_load_dwordx2 {vr(xr+2*i,2)}, v{vo}, s[{SX}:{SX+3}], s43 offen offset:{i*32}')
    e(f'v_bfe_u32 v{vt+3}, v0, 2, 2')
    e(f'v_lshl_add_u32 v{vt+4}, v{vt+1}, 3, v{vt+3}'); e(f'v_lshlrev_b32 v{vt+5}, 8, v{vt+4}')
    e(f'v_and_b32 v{vt+4}, 3, v0'); e(f'v_lshl_add_u32 v{vt+5}, v{vt+4}, 3, v{vt+5}')
    e(f'v_and_b32 v{vt+4}, 1, v{vt+1}'); e(f'v_lshl_add_u32 v{vt+3}, v{vt+4}, 2, v{vt+3}')
    e('s_lshl_b32 s42, s50, 2'); e(f'v_xor_b32 v{vt+3}, s42, v{vt+3}')
    for st in range(4):
        e(f'v_xor_b32 v{vt+4}, {st}, v{vt+3}'); e(f'v_lshl_add_u32 v{vw0+st}, v{vt+4}, 5, v{vt+5}')
    e(f'v_lshrrev_b32 v{vt+3}, 1, v{vt}'); e(f'v_xor_b32 v{vt+3}, v{vt+3}, v{vt+1}')
    e(f'v_lshlrev_b32 v{vt+4}, 7, v{vt}')
    e(f'v_lshl_add_u32 v{vg0}, v{vt+3}, 4, v{vt+4}')
    e(f'v_xor_b32 v{vt+3}, 4, v{vt+3}'); e(f'v_lshl_add_u32 v{vg0+1}, v{vt+3}, 4, v{vt+4}')
    for i in range(4): e(f'v_mov_b32 v{vw+i}, v{vw0+i}')
    for i in range(2): e(f'v_mov_b32 v{vg+i}, v{vg0+i}')
    for i in range(80): e(f'v_mov_b32 v{acc+i}, 0')
    e(f'v_lshlrev_b32 v{vp}, 4, v0')
    e('s_mov_b32 s44, 0')
    e('s_lshl_b32 s46, s7, 2'); e('s_add_u32 s46, s46, s5')
    e(f's_mul_i32 s47, s46, 135168'); e('s_cmp_ge_u32 s46, 52'); e(f's_mov_b32 s48, {QB_OFF}'); e(f's_cselect_b32 s48, {(HT_OFF - 52*135168) & 0xffffffff}, s48')
    e('s_add_u32 s47, s47, s48'); e('s_mul_i32 s48, s50, 5632'); e('s_add_u32 s47, s47, s48'); e('s_mul_i32 s48, s51, 3072'); e('s_add_u32 s47, s47, s48')
    def slot(o, src, sd=50): return f's_add_u32 s{sd}, s47, {(o * 3 + (src - o - 1) % 4) * 11264}'
    e('s_mov_b32 s49, 0xffff0000')
    e('s_sub_u32 s45, s40, 1')
    e('s_cmp_eq_u32 s51, 1'); e('s_cbranch_scc1 k2_c1')
    hc = list(e.hist)
    OF = ' sc1' if opts.get('wto', 0) else ''
    for dh in range(2):
        if dh: e.label('k2_c1'); e.hist = list(hc)
        ND = 4 if dh else 5; U = 2 * ND; LA = 3 if dh else opts.get('la', 4); B = U - LA; R = 8 if dh else 5
        lg = []
        def rdG(u):
            kk, dt = divmod(u, ND)
            if dt == 0:
                for st in range(4):
                    for j in range(2):
                        e(f'ds_read_b64_tr_b16 {vr(wr + kk*16 + st*4 + 2*j, 2)}, v{vw+st} offset:{kk*8192 + j*1024}'); lg.append(('W', kk, st))
                    if st == 0: e(f'ds_read_b128 {vr(gr + (u % R) * 4, 4)}, v{vg+kk} offset:{16384 + (5*dh + dt)*2048}'); lg.append(('G', u))
            else:
                e(f'ds_read_b128 {vr(gr + (u % R) * 4, 4)}, v{vg+kk} offset:{16384 + (5*dh + dt)*2048}'); lg.append(('G', u))
        def waitfor(tag):
            assert len(lg) <= 15, lg
            idx = [i for i, t in enumerate(lg) if t == tag]
            if not idx: return
            e(f's_waitcnt lgkmcnt({len(lg) - 1 - idx[-1]})')
            del lg[:idx[-1] + 1]
        def stage(last):
            for u in range(U):
                kk, dt = divmod(u, ND)
                if u == B: e('s_waitcnt lgkmcnt(0)'); lg.clear()
                else: waitfor(('G', u))
                for st in range(4):
                    waitfor(('W', kk, st))
                    a = vr(acc + (st * ND + dt) * 4, 4)
                    e(f'v_mfma_f32_16x16x32_bf16 {a}, {vr(gr + (u % R) * 4, 4)}, {vr(wr + kk*16 + st*4, 4)}, {a}')
                    if st == 0:
                        if u == B and not last:
                            e(f's_add_u32 s44, s44, {K2_SLOT}'); e(f's_cmp_ge_u32 s44, {D*K2_SLOT}'); e('s_cselect_b32 s44, 0, s44')
                            e('s_barrier')
                            for i in range(4): e(f'v_add_u32 v{vw+i}, s44, v{vw0+i}')
                            for i in range(2): e(f'v_add_u32 v{vg+i}, s44, v{vg0+i}')
                        if u < B: rdG(u + LA)
                        elif not last: rdG(u - B)
        e('s_barrier')
        stamp(e, 1)
        for u in range(LA): rdG(u)
        lg0 = list(lg)
        e.label(f'k2_cloop{dh}'); e.hist = []
        stage(False)
        assert lg == lg0, (lg, lg0)
        e('s_sub_u32 s45, s45, 1'); e('s_cmp_lg_u32 s45, 0'); e(f's_cbranch_scc1 k2_cloop{dh}')
        stage(True)
        stamp(e, 2)
        e(f'v_lshlrev_b32 v{vt+4}, 3, v0')
        e('s_waitcnt vmcnt(0)')
        for q in range(1, 4):
            e(f's_cmp_eq_u32 s6, {q}'); e(f's_cbranch_scc1 k2_q{dh}{q}')
        h0 = list(e.hist)
        nv = 4 * ND; n = ND
        for q in range(4):
            if q: e.label(f'k2_q{dh}{q}'); e.hist = list(h0)
            for gs, qq in [(gs, qq) for gs in ((0, 1), (2,)) for qq in (1, 2, 3)]:
                o = (q + qq) % 4; b = acc + o * nv
                e(slot(o, q))
                for g in gs:
                    for p in range(4):
                        j = 7 * g + 2 * p; d = b + 4 * g + p
                        if p < 3 and j < nv: e(f'v_cvt_pk_bf16_f32 v{d}, v{b+j}, v{b+j+1}')
                        elif p == 3 and g < 2: e(f'v_cvt_pk_bf16_f32 v{d}, v{b+j}, v{b+j}'); e(f'v_or_b32 v{d}, s49, v{d}')
                        elif p == 3 or (nv == 16 and p == 1): e(f'v_mov_b32 v{d}, s49')
                    if g < 2 or nv == 20: e(f'buffer_store_dwordx4 {vr(b+4*g,4)}, v{vp}, {ws}, s50 offen offset:{g * 1024} sc1')
                    else: e(f'buffer_store_dwordx2 {vr(b+8,2)}, v{vt+4}, {ws}, s50 offen offset:2048 sc1')
            stamp(e, 3)
            for k in range(3): e(slot(q, (q + 1 + k) % 4, 53 + k))
            def poll(part):
                for k in range(3):
                    if part == 0:
                        for j in range(2):
                            e(f'buffer_load_dwordx4 {vr(pr + k*12 + 4*j, 4)}, v{vp}, {ws}, s{53+k} offen offset:{j*1024} sc1')
                    elif n == 5: e(f'buffer_load_dwordx4 {vr(pr + k*12 + 8, 4)}, v{vp}, {ws}, s{53+k} offen offset:2048 sc1')
                    else: e(f'buffer_load_dwordx2 {vr(pr + k*12 + 8, 2)}, v{vt+4}, {ws}, s{53+k} offen offset:2048 sc1')
            tmp = pr + 40; ob = acc + q * nv
            e(f'v_lshlrev_b32 v{vb2}, 16, v{vb2}')
            for i in range(n):
                a = ob + 4 * i
                for h in range(2):
                    u = tmp + 4 * (i & 1) + 2 * h
                    e(f'v_lshlrev_b32 v{u}, 16, v{xr+2*i+h}'); e(f'v_and_b32 v{u+1}, 0xffff0000, v{xr+2*i+h}')
                    e(f'v_pk_add_f32 {vr(a+2*h,2)}, {vr(a+2*h,2)}, {vr(vb2,2)} op_sel_hi:[1,0]')
                    e(f'v_pk_add_f32 {vr(a+2*h,2)}, {vr(a+2*h,2)}, {vr(u,2)}')
            e('s_mov_b32 s51, 0x100000')
            lp = f'k2_poll{dh}{q}'; ok = f'k2_ok{dh}{q}'
            m3 = 11 if n == 5 else 9
            def chk(parts):
                r = ([pr+3, pr+7, pr+15, pr+19, pr+27, pr+31] if 0 in parts else []) + ([pr+m3, pr+12+m3, pr+24+m3] if 1 in parts else [])
                e('s_waitcnt vmcnt(0)')
                e(f'v_min3_u32 v{vt}, v{r[0]}, v{r[1]}, v{r[2]}')
                for i in range(3, len(r), 2): e(f'v_min3_u32 v{vt}, v{r[i]}, v{r[min(i+1, len(r)-1)]}, v{vt}')
                e(f'v_cmp_gt_u32 vcc, s49, v{vt}')
            e('s_waitcnt vmcnt(0)')
            poll(0); poll(1); chk((0, 1))
            e(f's_cbranch_vccz {ok}')
            e.label(lp); e.hist = []
            poll(1)
            e('s_sub_u32 s51, s51, 1'); e('s_cmp_eq_u32 s51, 0'); e('s_cbranch_scc1 k2_exit')
            chk((1,)); e(f's_cbranch_vccnz {lp}')
            stamp(e, 4)
            poll(0); chk((0,)); e(f's_cbranch_vccnz {lp}')
            e.label(ok); e.hist = []
            for i in range(n):
                a = ob + 4 * i
                for k in range(3):
                    for h in range(2):
                        u = tmp + 4 * (k & 1) + 2 * h
                        for z in range(2):
                            j = 4 * i + 2 * h + z; p = pr + k * 12 + 4 * (j // 7) + (j % 7) // 2
                            if (j % 7) & 1: e(f'v_and_b32 v{u+z}, 0xffff0000, v{p}')
                            else: e(f'v_lshlrev_b32 v{u+z}, 16, v{p}')
                        e(f'v_pk_add_f32 {vr(a+2*h,2)}, {vr(a+2*h,2)}, {vr(u,2)}')
                e(f'v_cvt_pk_bf16_f32 v{a}, v{a}, v{a+1}'); e(f'v_cvt_pk_bf16_f32 v{a+1}, v{a+2}, v{a+3}')
                e(f'buffer_store_dwordx2 {vr(a,2)}, v{vo}, s[{SO}:{SO+3}], s43 offen offset:{i*32}{OF}')
            endp(e, 2, SWS)

    e.label('k2_loader'); e.hist = []
    stamp(e, 1)
    e('s_setprio 3')
    vo_ = 8
    e('v_lshrrev_b32 v1, 4, v0')
    e('s_cmp_ge_u32 s3, 6'); e('s_cbranch_scc1 k2_ldg')
    h0 = list(e.hist)
    for kind in ('w', 'g'):
        n = 8 if kind == 'w' else 9
        TA = opts.get('ta', 0); n1 = n + (1 if TA else 0)
        if kind == 'w':
            e('v_bfe_u32 v2, v0, 1, 3'); e('v_xor_b32 v2, v2, v1'); e('v_and_b32 v3, 1, v0'); e('v_lshlrev_b32 v3, 4, v3')
            e('v_lshl_add_u32 v3, v1, 12, v3')
            e('v_lshl_add_u32 v5, v2, 5, v3'); e('v_xor_b32 v2, 4, v2'); e('v_lshl_add_u32 v6, v2, 5, v3')
            for i in range(n): e(f'v_add_u32 v{vo_+i}, {4*i*4096 - (i % 4)*1024}, v{5 + ((i >> 1) & 1)}')
            e('s_sub_u32 s41, s3, 4')
            e('s_lshl_b32 s42, s41, 17'); e('s_lshl_b32 s43, s7, 8'); e('s_add_u32 s42, s42, s43')
            e('s_lshl_b32 s43, s39, 18'); e('s_add_u32 s46, s42, s43')
            e(f's_add_u32 s42, s42, {OT_OFF}')
            e('s_lshl_b32 s47, s41, 13')
            step = 64 * 4096; S = SW2
            e('s_lshl_b32 s43, s5, 4'); e('s_mul_i32 s50, s41, 24'); e('s_sub_u32 s43, s43, s50'); e(f's_add_u32 s43, s43, {TA*64}'); e('s_lshl_b32 s43, s43, 12')
            e('v_lshrrev_b32 v2, 1, v0'); e('v_lshlrev_b32 v2, 12, v2'); e('v_and_b32 v3, 1, v0'); e('v_lshl_add_u32 v2, v3, 7, v2'); e('v_add_u32 v2, s43, v2')
            e('v_mov_b32 v7, 0x40000000'); e('v_cmp_gt_u32 vcc, 16, v0'); e('v_cndmask_b32 v7, v7, v2, vcc')
        else:
            e.label('k2_ldg'); e.hist = list(h0)
            e('v_lshrrev_b32 v3, 3, v0'); e(f'v_mul_u32_u24 v3, {GE_LD}, v3'); e('v_and_b32 v4, 7, v0'); e('v_xor_b32 v4, v4, v1')
            e('s_sub_u32 s41, s3, 6'); e('s_lshl_b32 s43, s41, 2'); e('v_xor_b32 v4, s43, v4')
            e('v_lshl_add_u32 v5, v4, 4, v3'); e('v_xor_b32 v4, 4, v4'); e('v_lshl_add_u32 v6, v4, 4, v3')
            for i in range(n): e(f'v_add_u32 v{vo_+i}, {8*i*GE_LD - (i % 4)*1024}, v{5 + (i & 1)}')
            e(f's_mul_i32 s46, s5, {144*GE_LD}'); e(f's_mul_i32 s43, s41, {72*GE_LD}'); e('s_add_u32 s46, s46, s43')
            e('s_lshl_b32 s43, s39, 7'); e('s_add_u32 s46, s46, s43'); e(f's_add_u32 s46, s46, {GE_OFF}')
            e('s_mul_i32 s47, s41, 9216'); e('s_add_u32 s47, s47, 16384')
            step = 128; S = SWS
            e('s_and_b32 s43, s7, 7'); e('s_mul_i32 s43, s43, 18'); e('s_mul_i32 s50, s41, 63'); e('s_sub_i32 s43, s43, s50'); e(f's_mul_i32 s43, s43, {GE_LD}'); e(f's_add_i32 s43, s43, {TA*128}')
            e(f'v_mul_u32_u24 v2, {GE_LD}, v0'); e('s_add_i32 s51, s46, s43')
            e('v_mov_b32 v7, 0x40000000'); e('v_cmp_gt_u32 vcc, 9, v0'); e('v_cndmask_b32 v7, v7, v2, vcc')
            if opts.get('xc', 0):
                e('v_lshlrev_b32 v7, 4, v0')
                for i in range(n): e(f'v_add_u32 v{vo_+i}, {(i - i % 4)*1024}, v7')
                e('s_mul_i32 s46, s5, 81'); e('s_add_u32 s46, s46, s39'); e('s_mul_i32 s46, s46, 18432'); e('s_mul_i32 s43, s41, 9216'); e('s_add_u32 s46, s46, s43')
                e(f's_add_u32 s46, s46, {GE_OFF}'); step = 18432
        if opts.get('xs', 0): step = 0
        e(f's_add_u32 s48, s47, {D*K2_SLOT}')
        e('s_mov_b32 s44, s47')
        e('s_mov_b32 s49, s39')
        def issue():
            if kind == 'w':
                l = e.newlabel('k2sw')
                e('s_cmp_lg_u32 s49, 72'); e(f's_cbranch_scc1 {l}')
                srd(e, SW2, 30, WS_USED); e('s_mov_b32 s46, s42')
                e.label(l)
                e('s_add_u32 s49, s49, 1')
            if TA:
                e(f'buffer_load_dword v20, v7, s[{S}:{S+3}], s{46 if kind == "w" else 51} offen')
                if kind == 'g': e('s_add_u32 s51, s51, 128')
            for i in range(n if X != 1 else 0):
                if i % 4 == 0: e(f's_add_u32 m0, s44, {i*1024}')
                e(f'buffer_load_dwordx4 v{vo_+i}, s[{S}:{S+3}], s46 offen offset:{(i%4)*1024} lds')
            e(f's_add_u32 s46, s46, {step}')
            e(f's_add_u32 s44, s44, {K2_SLOT}'); e('s_cmp_ge_u32 s44, s48'); e('s_cselect_b32 s44, s47, s44')
        stamp(e, 2)
        issue(); stamp(e, 3); issue()
        e(f's_waitcnt vmcnt({n1})'); stamp(e, 4); e('s_barrier')
        for _ in range(D - 2): issue()
        e(f's_sub_u32 s45, s40, {D}')
        lq = f'k2_lq{kind}'
        e.label(lq); e.hist = []
        e(f's_waitcnt vmcnt({n1*(D-2)})'); e('s_barrier')
        issue()
        e('s_sub_u32 s45, s45, 1'); e('s_cmp_lg_u32 s45, 0'); e(f's_cbranch_scc1 {lq}')
        for r in range(D - 2, -1, -1):
            e(f's_waitcnt vmcnt({n1*r})'); e('s_barrier')
        endp(e, 2, SWS)
    e.label('k2_exit')
    e('s_endpgm')
    return name, 256, D * K2_SLOT
```
